```python
import torch

def _softmax(x, axis=-1):
    return torch.softmax(x, dim=axis)
def _gelu(x):
    return torch.nn.functional.gelu(x, approximate="tanh")
def _silu(x):
    return torch.nn.functional.silu(x)
def _sigmoid(x):
    return torch.sigmoid(x)
def _layernorm(x, axis=-1, eps=1e-5):
    m = x.mean(dim=axis, keepdim=True)
    v = x.var(dim=axis, keepdim=True, unbiased=False)
    return (x - m) / torch.sqrt(v + eps)
def _scatter_add(tgt, idx, src, axis=0):
    return tgt.clone().index_add_(axis, idx, src)
def _segment_sum(src, seg, n):
    out = torch.zeros((n,) + src.shape[1:], dtype=src.dtype)
    return out.index_add_(0, seg, src)
def _pad(x, pw):
    flat = tuple(v for pair in reversed(pw) for v in pair)
    return torch.nn.functional.pad(x, flat)

kernel_name = 'gather_scatter__kernel_systems_refs_featgraph__graph'

def setup_inputs():

    _w = (lambda a: (lambda t: t.to(torch.bfloat16) if t.is_floating_point() else t)(torch.as_tensor(a)))
    N, deg, D = 12500, 32, 128
    E = N * deg
    scale = D ** -0.5
    src = (lambda lo, hi, *s: torch.randint(lo, hi, s))(0, N, E).to(torch.int64)
    dst = (lambda lo, hi, *s: torch.randint(lo, hi, s))(0, N, E).to(torch.int64)
    return {
        "x": _w((lambda *s: torch.randn(*s, dtype=torch.bfloat16) * 0.8)(N, D)),
        "src": _w(src),
        "dst": _w(dst),
        "w_q": _w((lambda *s: torch.randn(*s, dtype=torch.bfloat16) * 0.8)(D, D) * scale),
        "w_v": _w((lambda *s: torch.randn(*s, dtype=torch.bfloat16) * 0.05)(D, D) * scale),
    }

def reference(x, src, dst, w_q, w_v):
    N, D = x.shape
    xs = x[src]
    xd = x[dst]
    q = xd @ w_q
    logits = torch.einsum('ed,ed->e', xs, q) * (float(D) ** -0.5)
    alpha = _sigmoid(logits)
    msg = alpha[:, None] * (xs @ w_v)
    return _segment_sum(msg, dst, N)
```

```python
import math
import sys

MAIN = "gather_scatter__kernel_systems_refs_featgraph__graph_kernel"
K1 = "gs_bucket_kernel"

N_NODES = 12500
N_EDGES = 400000
CHUNK = 1564
REC_STRIDE = 6400
REC_OFF = 0
TAB_OFF = 0x190000
WF_OFF = 0x1D0000
WS_SIZE = 0x1E0000

L_CNT = 0
L_FLAG = 256
L_LIST = 1024
L_QT = 35072
L_XT = 51456
L_AGG = 68096
L_END = 100864

NW = 16
P = 3

QSCALE = -math.log2(math.e) / math.sqrt(128.0)


def f32bits(x):
    import struct
    return struct.unpack("<I", struct.pack("<f", x))[0]


class Asm:
    def __init__(self):
        self.lines = []

    def __call__(self, text=""):
        for ln in text.strip("\n").split("\n"):
            self.lines.append(ln.rstrip())

    def text(self):
        return "\n".join(self.lines) + "\n"


def vr(a, n):
    return f"v[{a}:{a + n - 1}]"


def srd(a, dst, lo, hi, nrec, stride=0):
    a(f"    s_mov_b32 s{dst}, s{lo}")
    a(f"    s_and_b32 s{dst + 1}, s{hi}, 0xffff")
    if stride:
        a(f"    s_or_b32 s{dst + 1}, s{dst + 1}, {hex(stride << 16)}")
    a(f"    s_mov_b32 s{dst + 2}, {hex(nrec)}")
    a(f"    s_mov_b32 s{dst + 3}, 0x20000")


def scan64(a, reg):
    for ctl in ("row_shr:1", "row_shr:2", "row_shr:4", "row_shr:8"):
        a(f"    s_nop 1")
        a(f"    v_add_u32_dpp v{reg}, v{reg}, v{reg} {ctl} row_mask:0xf bank_mask:0xf bound_ctrl:1")
    a(f"    s_nop 1")
    a(f"    v_add_u32_dpp v{reg}, v{reg}, v{reg} row_bcast:15 row_mask:0xa bank_mask:0xf")
    a(f"    s_nop 1")
    a(f"    v_add_u32_dpp v{reg}, v{reg}, v{reg} row_bcast:31 row_mask:0xc bank_mask:0xf")


def gen_k1(a, opt):
    a(f"""
.globl {K1}
.p2align 8
.type {K1},@function
{K1}:
    s_cmp_ge_u32 s2, 272
    s_cbranch_scc1 K1_END
    s_load_dwordx4 s[4:7], s[0:1], 8
    s_load_dwordx4 s[8:11], s[0:1], 24
    s_load_dwordx2 s[12:13], s[0:1], 56
    s_cmp_ge_u32 s2, 256
    s_cbranch_scc1 K1_WPREP
    v_lshlrev_b32 v1, 2, v0
    v_mov_b32 v2, 0
    ds_write_b32 v1, v2
    s_mul_i32 s14, s2, {CHUNK * 4}
    v_lshlrev_b32 v3, 4, v0
    v_add_u32 v4, s14, v3
    v_add_u32 v5, 0x1000, v4
    s_movk_i32 s15, {(CHUNK - 1024) // 4}
    s_cmp_eq_u32 s2, 255
    s_cselect_b32 s15, {(N_EDGES - 255 * CHUNK - 1024) // 4}, s15
    s_and_b32 s28, s2, 7
    s_lshl_b32 s28, s28, 5
    s_lshr_b32 s29, s2, 3
    s_add_u32 s28, s28, s29
    v_mov_b32 v6, 1
    v_cmp_gt_u32 vcc, s15, v0
    s_mov_b64 s[32:33], vcc
    s_waitcnt lgkmcnt(0)
""")
    srd(a, 16, 4, 5, N_EDGES * 4)
    srd(a, 20, 6, 7, N_EDGES * 4)
    srd(a, 24, 12, 13, WS_SIZE)
    a(f"""
    buffer_load_dwordx4 v[8:11], v4, s[20:23], 0 offen
    buffer_load_dwordx4 v[12:15], v4, s[16:19], 0 offen
    s_mov_b64 exec, s[32:33]
    s_cbranch_execz K1_A
    buffer_load_dwordx4 v[16:19], v5, s[20:23], 0 offen
    buffer_load_dwordx4 v[20:23], v5, s[16:19], 0 offen
K1_A:
    s_mov_b64 exec, -1
    s_barrier
    s_waitcnt vmcnt(0)
""")

    def edges(dbase, sbase, abase, rbase):
        for e in range(4):
            a(f"    v_lshlrev_b32_sdwa v{abase + e}, 2, v{dbase + e} dst_sel:DWORD dst_unused:UNUSED_PAD src0_sel:DWORD src1_sel:BYTE_0")
            a(f"    ds_add_rtn_u32 v{rbase + e}, v{abase + e}, v6")
        for e in range(4):
            a(f"    v_lshrrev_b32 v7, 8, v{dbase + e}")
            a(f"    v_lshl_or_b32 v{sbase + e}, v7, 24, v{sbase + e}")
            a(f"    v_and_b32 v7, 7, v7")
            a(f"    v_lshl_or_b32 v{sbase + e}, v7, 20, v{sbase + e}")

    edges(8, 12, 24, 32)
    a("""
    s_mov_b64 exec, s[32:33]
    s_cbranch_execz K1_B
""")
    edges(16, 20, 28, 36)
    a("""
K1_B:
    s_mov_b64 exec, -1
    s_waitcnt lgkmcnt(0)
    s_barrier
    v_and_b32 v48, 63, v0
    v_lshlrev_b32 v48, 4, v48
    ds_read_b128 v[52:55], v48
    ds_read_b32 v56, v1
    s_waitcnt lgkmcnt(0)
    v_add_u32 v49, v52, v53
    v_add_u32 v50, v49, v54
    v_add_u32 v51, v50, v55
    v_mov_b32 v57, v51
""")
    scan64(a, 57)
    a(f"""
    v_sub_u32 v58, v57, v51
    v_add_u32 v59, v58, v52
    v_add_u32 v60, v58, v49
    v_add_u32 v61, v58, v50
    ds_write_b128 v48, v[58:61] offset:1024
""")
    for e in range(4):
        a(f"    ds_read_b32 v{40 + e}, v{24 + e} offset:1024")
    a("    ds_read_b32 v62, v1 offset:1024")
    a("""
    s_mov_b64 exec, s[32:33]
    s_cbranch_execz K1_C
""")
    for e in range(4):
        a(f"    ds_read_b32 v{44 + e}, v{28 + e} offset:1024")
    a("    s_waitcnt lgkmcnt(0)")
    for e in range(4):
        a(f"    v_add_lshl_u32 v{44 + e}, v{44 + e}, v{36 + e}, 2")
        a(f"    ds_write_b32 v{44 + e}, v{20 + e} offset:2048")
    a("""
K1_C:
    s_mov_b64 exec, -1
    s_waitcnt lgkmcnt(0)
""")
    for e in range(4):
        a(f"    v_add_lshl_u32 v{40 + e}, v{40 + e}, v{32 + e}, 2")
        a(f"    ds_write_b32 v{40 + e}, v{12 + e} offset:2048")
    a(f"""
    v_lshl_or_b32 v62, v56, 16, v62
    v_lshlrev_b32 v63, 10, v0
    s_lshl_b32 s29, s28, 2
    s_add_u32 s29, s29, {hex(TAB_OFF)}
    buffer_store_dword v62, v63, s[24:27], s29 offen
    s_mul_i32 s30, s28, {REC_STRIDE}
    v_add_u32 v5, 0x1000, v3
    s_waitcnt lgkmcnt(0)
    s_barrier
    ds_read_b128 v[8:11], v3 offset:2048
    s_mov_b64 exec, s[32:33]
    s_cbranch_execz K1_D
    ds_read_b128 v[12:15], v3 offset:6144
    s_waitcnt lgkmcnt(0)
    buffer_store_dwordx4 v[12:15], v5, s[24:27], s30 offen
K1_D:
    s_mov_b64 exec, -1
    s_waitcnt lgkmcnt(0)
    buffer_store_dwordx4 v[8:11], v3, s[24:27], s30 offen
    s_endpgm

K1_WPREP:
    s_sub_u32 s14, s2, 256
    s_lshr_b32 s15, s14, 3
    s_and_b32 s28, s14, 7
    v_and_b32 v1, 15, v0
    v_bfe_u32 v2, v0, 4, 2
    v_lshrrev_b32 v3, 6, v0
    v_lshlrev_b32 v3, 13, v3
    v_lshl_add_u32 v3, v2, 11, v3
    v_lshl_add_u32 v3, v1, 1, v3
    s_lshl_b32 s29, s28, 5
    v_add_u32 v3, s29, v3
    v_lshlrev_b32 v4, 4, v0
    s_lshl_b32 s30, s14, 12
    s_add_u32 s30, s30, {hex(WF_OFF)}
    s_cmp_eq_u32 s15, 0
    s_waitcnt lgkmcnt(0)
    s_cselect_b32 s16, s8, s10
    s_cselect_b32 s17, s9, s11
    s_and_b32 s17, s17, 0xffff
    s_mov_b32 s18, 0x8000
    s_mov_b32 s19, 0x20000
""")
    srd(a, 24, 12, 13, WS_SIZE)
    for j in range(8):
        a(f"    buffer_load_ushort v{8 + j}, v3, s[16:19], 0 offen offset:{j * 256}")
    a("    s_waitcnt vmcnt(0)")
    for j in range(4):
        a(f"    v_lshl_or_b32 v{16 + j}, v{9 + 2 * j}, 16, v{8 + 2 * j}")
    a(f"""
    buffer_store_dwordx4 v[16:19], v4, s[24:27], s30 offen
K1_END:
    s_endpgm
""")


V_IDXA, V_COFFA, V_IDXB, V_COFFB = 2, 3, 4, 5
V_SIDX, V_P, V_RA, V_FK, V_NEND = 6, 7, 8, 9, 10
V_QVA, V_QVB = 11, 12
V_SEG = 13
V_PA, V_PB, V_T, V_AP, V_APX = 14, 15, 16, 17, 18
V_REM = 19
V_A = 20
V_D0, V_D1 = 24, 28
V_Q = 32
V_X = 48
V_WV = 96
V_REC = 112
V_TMP = 120
S_KEY, S_W, S_ROUND = 3, 10, 11
S_XI, S_XR, S_OUT, S_WS = 12, 16, 20, 24
S_S, S_PEND, S_NEND, S_REM = 28, 29, 30, 31
S_M, S_NODE, S_SEL, S_SPLIT, S_T = 32, 34, 35, 36, 37
S_VALID = 38
S_HASB = 43


def seg_loads(a, tag):
    a(f"""
    buffer_load_dwordx4 {vr(V_REC, 4)}, v{V_SEG}, s[{S_WS}:{S_WS + 3}], 0 offen
""")


def seg_load_b(a, tag):
    a(f"""
    v_cmp_lt_i32 vcc, 16, v{V_REM}
    s_mov_b32 s{S_HASB}, 0
    s_cmp_eq_u64 vcc, 0
    s_cbranch_scc1 K2_NOB_{tag}
    s_mov_b32 s{S_HASB}, 1
    buffer_load_dwordx4 {vr(V_REC + 4, 4)}, v{V_SEG}, s[{S_WS}:{S_WS + 3}], 0 offen offset:64
K2_NOB_{tag}:
""")


def a_setup(a, src):
    a(f"    v_mov_b32_dpp v{V_A + 0}, v{src} quad_perm:[0,1,2,3] row_mask:0xf bank_mask:0x5")
    a(f"    v_mov_b32_dpp v{V_A + 1}, v{src} row_shr:4 row_mask:0xf bank_mask:0xa")
    a(f"    v_mov_b32_dpp v{V_A + 2}, v{src} row_shl:4 row_mask:0xf bank_mask:0x5")
    a(f"    v_mov_b32_dpp v{V_A + 3}, v{src} quad_perm:[0,1,2,3] row_mask:0xf bank_mask:0xa")


def smf(a, X):
    a(f"    v_smfmac_f32_16x16x64_bf16 {vr(V_D0, 4)}, {vr(V_A, 4)}, {vr(X, 8)}, v{V_SIDX}")
    a(f"    v_smfmac_f32_16x16x64_bf16 {vr(V_D1, 4)}, {vr(V_A, 4)}, {vr(X + 8, 8)}, v{V_SIDX}")


def xloads(a, X, ia, ib):
    s = f"s[{S_XI}:{S_XI + 3}]"
    a(f"    buffer_load_dwordx4 {vr(X + 0, 4)}, {vr(ia, 2)}, {s}, 0 idxen offen")
    a(f"    buffer_load_dwordx4 {vr(X + 8, 4)}, {vr(ia, 2)}, {s}, 0 idxen offen offset:128")
    a(f"    buffer_load_dwordx4 {vr(X + 4, 4)}, {vr(ib, 2)}, {s}, 0 idxen offen")
    a(f"    buffer_load_dwordx4 {vr(X + 12, 4)}, {vr(ib, 2)}, {s}, 0 idxen offen offset:128")


def qreads(a):
    a(f"    v_xor_b32 v{V_QVA}, v{V_QVA}, v{V_COFFA}")
    a(f"    v_xor_b32 v{V_QVB}, v{V_QVB}, v{V_COFFA}")
    a(f"    ds_read_b128 {vr(V_Q + 0, 4)}, v{V_QVA} offset:{L_QT}")
    a(f"    ds_read_b128 {vr(V_Q + 4, 4)}, v{V_QVA} offset:{L_QT + 128}")
    a(f"    ds_read_b128 {vr(V_Q + 8, 4)}, v{V_QVB} offset:{L_QT}")
    a(f"    ds_read_b128 {vr(V_Q + 12, 4)}, v{V_QVB} offset:{L_QT + 128}")


def step(a, s):
    X = V_X + 16 * s
    a(f"""
K2_STEP{s}:
    s_cmp_lt_u32 s{S_REM}, {P - 1}
    s_cbranch_scc1 K2_TAIL{s}
    s_waitcnt vmcnt({4 * (P - 1)}) lgkmcnt(2)
K2_BACK{s}:
""")
    for i in range(8):
        xa = X + (i if i < 4 else 8 + i - 4)
        xb = X + 4 + (i if i < 4 else 8 + i - 4)
        qa = V_Q + i
        qb = V_Q + 8 + i
        ca = "0" if i == 0 else f"v{V_PA}"
        cb = "0" if i == 0 else f"v{V_PB}"
        a(f"    v_dot2_f32_bf16 v{V_PA}, v{xa}, v{qa}, {ca}")
        a(f"    v_dot2_f32_bf16 v{V_PB}, v{xb}, v{qb}, {cb}")
    qreads(a)
    a(f"""
    ds_read_u16 v{V_QVA}, v{V_RA} offset:{2 * 64 + 2}
    ds_read_u16 v{V_QVB}, v{V_RA} offset:{2 * 64 + 34}
    v_permlane32_swap_b32 v{V_PA}, v{V_PB}
    s_nop 1
    v_permlane16_swap_b32 v{V_PA}, v{V_PB}
    s_nop 1
    v_add_f32_dpp v{V_T}, v{V_PA}, v{V_PA} row_shl:4 row_mask:0xf bank_mask:0x5
    v_add_f32_dpp v{V_T}, v{V_PB}, v{V_PB} row_shr:4 row_mask:0xf bank_mask:0xa
    s_nop 1
    v_add_f32_dpp v{V_T}, v{V_T}, v{V_T} quad_perm:[1,0,3,2] row_mask:0xf bank_mask:0xf
    s_nop 1
    v_add_f32_dpp v{V_T}, v{V_T}, v{V_T} quad_perm:[2,3,0,1] row_mask:0xf bank_mask:0xf
    v_exp_f32 v{V_T}, v{V_T}
    s_add_u32 s{S_PEND}, s{S_PEND}, 16
    v_add_f32 v{V_T}, 1.0, v{V_T}
    v_rcp_f32 v{V_T}, v{V_T}
    s_cmp_le_u32 s{S_NEND}, s{S_PEND}
    v_cvt_pk_bf16_f32 v{V_AP}, v{V_T}, 0
    s_cbranch_scc1 K2_BND{s}
    s_nop 0
K2_RET{s}:
""")
    a_setup(a, V_AP)
    a("    s_nop 1")
    smf(a, X)
    a(f"""
    s_cmp_lt_u32 s{S_REM}, {P}
    s_cbranch_scc1 K2_SKIP{s}
    s_waitcnt lgkmcnt(6)
""")
    xloads(a, X, V_IDXA, V_IDXB)
    a(f"""
    ds_read_u16 v{V_IDXA}, v{V_RA} offset:{(P + 1) * 64}
    ds_read_u16 v{V_IDXB}, v{V_RA} offset:{(P + 1) * 64 + 32}
K2_SKIP{s}:
    v_add_u32 v{V_RA}, 64, v{V_RA}
    s_sub_u32 s{S_REM}, s{S_REM}, 1
    s_cbranch_scc1 K2_LOOP_END
""")


def step_ool(a, s):
    X = V_X + 16 * s
    a(f"""
K2_TAIL{s}:
    s_cmp_eq_u32 s{S_REM}, 0
    s_cbranch_scc1 K2_TAILZ{s}
    s_waitcnt vmcnt(4) lgkmcnt(0)
    s_branch K2_BACK{s}
K2_TAILZ{s}:
    s_waitcnt vmcnt(0) lgkmcnt(0)
    s_branch K2_BACK{s}
K2_BND{s}:
    s_sub_u32 s{S_SPLIT}, s{S_NEND}, s{S_PEND}
    s_add_u32 s{S_SPLIT}, s{S_SPLIT}, 16
    v_cmp_gt_u32 vcc, s{S_SPLIT}, v{V_P}
    s_mov_b32 s{S_SEL}, {s}
    s_nop 0
    v_cndmask_b32 v{V_APX}, 0, v{V_AP}, vcc
    v_cndmask_b32_e64 v{V_AP}, v{V_AP}, 0, vcc
    s_nop 1
""")
    a_setup(a, V_APX)
    a("    s_nop 1")
    smf(a, X)
    a("    s_branch K2_FLUSH")


def gen_k2(a, opt):
    a(f"""
.globl {MAIN}
.p2align 8
.type {MAIN},@function
{MAIN}:
    s_cmp_ge_u32 s2, 256
    s_cbranch_scc1 K2_END
    s_load_dwordx2 s[4:5], s[0:1], 0
    s_load_dwordx2 s[6:7], s[0:1], 40
    s_load_dwordx2 s[8:9], s[0:1], 56
    v_lshrrev_b32 v1, 6, v0
    s_and_b32 s{S_KEY}, s2, 7
    s_lshl_b32 s{S_KEY}, s{S_KEY}, 5
    v_readfirstlane_b32 s{S_W}, v1
    s_lshr_b32 s40, s2, 3
    s_add_u32 s{S_KEY}, s{S_KEY}, s40
    s_mov_b32 s{S_ROUND}, 0
    s_mov_b32 s{S_VALID}, 0x00ff00ff
    s_mov_b32 s{S_VALID + 1}, 0xff00ff00
    ; v1 = lane
    v_and_b32 v1, 63, v0
    v_and_b32 v32, 0x3fc, v0
    v_lshrrev_b32 v33, 4, v0
    v_and_b32 v34, 15, v0
    v_lshlrev_b32 v35, 16, v33
    v_lshl_or_b32 v35, v34, 4, v35
    s_lshl_b32 s41, s{S_KEY}, 8
    v_add_u32 v35, s41, v35
    v_lshlrev_b32 v36, 4, v1
    s_lshl_b32 s42, s{S_KEY}, 10
    s_add_u32 s42, s42, {hex(TAB_OFF)}
    s_and_b32 s44, s{S_W}, 7
    s_lshl_b32 s45, s44, 12
    s_add_u32 s45, s45, {hex(WF_OFF)}
    s_add_u32 s46, s45, 0x8000
    s_waitcnt lgkmcnt(0)
""")
    srd(a, S_WS, 8, 9, WS_SIZE)
    srd(a, S_XR, 4, 5, N_NODES * 256)
    ws = f"s[{S_WS}:{S_WS + 3}]"
    a(f"""
    buffer_load_dword v37, v32, {ws}, s42 offen
    buffer_load_dwordx4 v[40:43], v35, s[{S_XR}:{S_XR + 3}], 0 offen
""")
    for ks in range(4):
        a(f"    buffer_load_dwordx4 {vr(V_X + 4 * ks, 4)}, v36, {ws}, s45 offen offset:{ks * 1024}")
    for ks in range(4):
        a(f"    buffer_load_dwordx4 {vr(V_WV + 4 * ks, 4)}, v36, {ws}, s46 offen offset:{ks * 1024}")
    srd(a, S_XI, 4, 5, N_NODES, stride=256)
    srd(a, S_OUT, 6, 7, N_NODES * 256)
    a(f"""
    v_mov_b32 v44, 0
    v_mov_b32 v45, 0
    v_mov_b32 v46, 0
    v_mov_b32 v47, 0
    v_lshlrev_b32 v38, 4, v0
    v_add_u32 v38, {L_AGG}, v38
    ds_write_b128 v38, v[44:47]
    ds_write_b128 v38, v[44:47] offset:16384
    v_and_b32 v39, 127, v0
    v_lshlrev_b32 v39, 2, v39
    ds_write_b32 v39, v44
    v_and_b32 v{V_COFFA}, 7, v1
    v_and_b32 v{V_SIDX}, 3, v1
    v_lshlrev_b32 v{V_COFFA}, 4, v{V_COFFA}
    v_mov_b32 v{V_COFFB}, v{V_COFFA}
    v_mul_u32_u24 v{V_SIDX}, 0x1111, v{V_SIDX}
    v_lshrrev_b32 v{V_P}, 4, v1
    v_lshlrev_b32 v{V_P}, 2, v{V_P}
    v_bfe_u32 v39, v1, 2, 1
    v_lshl_add_u32 v{V_P}, v39, 1, v{V_P}
    v_bfe_u32 v39, v1, 3, 1
    v_add_u32 v{V_P}, v39, v{V_P}
    v_lshl_or_b32 v{V_FK}, v39, 8, v{V_COFFA}
    v_bfe_u32 v39, v1, 4, 1
    v_lshl_or_b32 v{V_FK}, v39, 3, v{V_FK}
    v_mov_b32 v{V_A + 0}, 0
    v_mov_b32 v{V_A + 1}, 0
    v_mov_b32 v{V_A + 2}, 0
    v_mov_b32 v{V_A + 3}, 0
    v_and_b32 v38, 7, v33
    v_xor_b32 v38, v34, v38
    v_and_b32 v39, 8, v34
    v_and_b32 v38, 7, v38
    v_or_b32 v38, v39, v38
    v_lshlrev_b32 v38, 4, v38
    v_lshl_or_b32 v{V_TMP + 7}, v33, 8, v38
    v_lshrrev_b32 v38, 2, v0
    v_mul_u32_u24 v{V_SEG}, {REC_STRIDE}, v38
    v_and_b32 v39, 3, v0
    v_lshl_add_u32 v{V_SEG}, v39, 4, v{V_SEG}
    v_lshlrev_b32 v39, 2, v39
    s_waitcnt vmcnt(9)
    v_and_b32 v38, 0xffff, v37
    v_lshrrev_b32 v37, 16, v37
    v_lshl_add_u32 v{V_SEG}, v38, 2, v{V_SEG}
    v_sub_u32 v{V_REM}, v37, v39
""")
    seg_loads(a, "r0")
    a(f"""
    s_waitcnt vmcnt(9)
    ds_write_b128 v{V_TMP + 7}, v[40:43] offset:{L_XT}
""")
    seg_load_b(a, "r0")
    a(f"""
    v_and_b32 v32, 15, v1
    v_lshrrev_b32 v33, 4, v1
    v_and_b32 v34, 7, v1
    v_xor_b32 v35, v33, v34
    v_lshlrev_b32 v35, 4, v35
    v_lshl_or_b32 v35, v32, 8, v35
    s_lshr_b32 s47, s{S_W}, 3
    s_lshl_b32 s48, s47, 13
    v_add_u32 v35, s48, v35
    v_xor_b32 v36, 64, v35
    s_waitcnt lgkmcnt(0)
    s_barrier
""")
    B0 = V_X + 16
    for tt in range(2):
        for ks in range(4):
            ad = 35 if ks % 2 == 0 else 36
            a(f"    ds_read_b128 {vr(B0 + (tt * 4 + ks) * 4, 4)}, v{ad} offset:{L_XT + tt * 4096 + (ks >> 1) * 128}")
    a(f"""
    s_lshl_b32 s49, s44, 5
    v_lshrrev_b32 v37, 1, v33
    v_lshlrev_b32 v37, 4, v37
    v_add_u32 v37, s49, v37
    v_lshlrev_b32 v38, 4, v34
    v_xor_b32 v37, v37, v38
    v_and_b32 v38, 1, v33
    v_lshl_or_b32 v37, v38, 3, v37
    v_lshl_or_b32 v37, v32, 8, v37
    v_add_u32 v{V_TMP + 6}, s48, v37
    s_waitcnt vmcnt(5) lgkmcnt(0)
""")
    for ks in range(4):
        for tt in range(2):
            d = V_D0 + 4 * tt
            c = "0" if ks == 0 else vr(d, 4)
            a(f"    v_mfma_f32_16x16x32_bf16 {vr(d, 4)}, {vr(V_X + 4 * ks, 4)}, {vr(B0 + (tt * 4 + ks) * 4, 4)}, {c}")
    a(f"""
    s_mov_b32 s50, {hex(f32bits(QSCALE))}
    s_nop 7
""")
    for i in range(8):
        a(f"    v_mul_f32 v{V_D0 + i}, s50, v{V_D0 + i}")
    for tt in range(2):
        a(f"    v_cvt_pk_bf16_f32 v{40 + 2 * tt}, v{V_D0 + 4 * tt}, v{V_D0 + 4 * tt + 1}")
        a(f"    v_cvt_pk_bf16_f32 v{41 + 2 * tt}, v{V_D0 + 4 * tt + 2}, v{V_D0 + 4 * tt + 3}")
        a(f"    ds_write_b64 v{V_TMP + 6}, {vr(40 + 2 * tt, 2)} offset:{L_QT + tt * 4096}")

    AD, RK, BS = 32, 40, 64
    a(f"""
K2_PASS1:
    v_mov_b32 v{V_T}, 1
    s_waitcnt vmcnt(0)
""")

    def pass1(first):
        for d in range(4):
            k = first + d
            off = d + (16 if first else 0)
            a(f"    v_cmp_lt_i32 vcc, {off}, v{V_REM}")
            a(f"    s_mov_b64 exec, vcc")
            a(f"    v_lshlrev_b32_sdwa v{AD + k}, 2, v{V_REC + k} dst_sel:DWORD dst_unused:UNUSED_PAD src0_sel:DWORD src1_sel:BYTE_3")
            a(f"    ds_add_rtn_u32 v{RK + k}, v{AD + k}, v{V_T}")
        a("    s_mov_b64 exec, -1")

    pass1(0)
    a(f"""
    s_cmp_eq_u32 s{S_HASB}, 0
    s_cbranch_scc1 K2_P1_NOB
""")
    pass1(4)
    a(f"""
    v_cmp_lt_i32 vcc, 32, v{V_REM}
    s_cmp_eq_u64 vcc, 0
    s_cbranch_scc1 K2_P1_NOB
    s_mov_b64 exec, vcc
    v_mov_b32 v{V_PA}, {L_FLAG}
    ds_write_b32 v{V_PA}, v{V_T}
    s_mov_b64 exec, -1
K2_P1_NOB:
    s_waitcnt lgkmcnt(0)
    s_barrier
    v_lshlrev_b32 v{V_PA}, 2, v1
    ds_read_b32 v{V_PB}, v{V_PA}
    s_waitcnt lgkmcnt(0)
    v_mov_b32 v{V_T}, v{V_PB}
""")
    scan64(a, V_T)
    a(f"""
    s_nop 0
    v_readlane_b32 s{S_T}, v{V_T}, 63
    v_sub_u32 v{V_T}, v{V_T}, v{V_PB}
    v_cvt_f32_u32 v{V_AP}, v{V_T}
    v_cvt_f32_u32 v{V_APX}, s{S_T}
    v_rcp_f32 v{V_APX}, v{V_APX}
    s_nop 0
    v_mul_f32 v{V_APX}, {float(NW)}, v{V_APX}
    v_mul_f32 v{V_AP}, v{V_AP}, v{V_APX}
    v_cvt_u32_f32 v{V_AP}, v{V_AP}
    v_min_u32 v{V_AP}, {NW - 1}, v{V_AP}
    v_lshl_add_u32 v{V_T}, v{V_AP}, 4, v{V_T}
    v_add_u32 v{V_NEND}, v{V_T}, v{V_PB}
    v_cmp_eq_u32 s[{S_M}:{S_M + 1}], s{S_W}, v{V_AP}
    v_cmp_lt_u32 vcc, 0, v{V_PB}
""")
    for k in range(4):
        a(f"    ds_bpermute_b32 v{BS + k}, v{AD + k}, v{V_T}")
    a(f"""
    s_and_b64 s[{S_M}:{S_M + 1}], s[{S_M}:{S_M + 1}], vcc
    s_mov_b32 s{S_S}, 0
    s_mov_b32 s{S_REM}, 0
    s_cmp_eq_u64 s[{S_M}:{S_M + 1}], 0
    s_cbranch_scc1 K2_NOWORK_A
    s_ff1_i32_b64 s40, s[{S_M}:{S_M + 1}]
    s_flbit_i32_b64 s41, s[{S_M}:{S_M + 1}]
    s_sub_u32 s41, 63, s41
    v_readlane_b32 s{S_S}, v{V_T}, s40
    v_readlane_b32 s42, v{V_NEND}, s41
    s_nop 3
    s_sub_u32 s{S_REM}, s42, s{S_S}
    s_add_u32 s{S_REM}, s{S_REM}, 15
    s_lshr_b32 s{S_REM}, s{S_REM}, 4
    s_min_u32 s{S_REM}, s{S_REM}, 600
    v_add_u32 v{V_PA}, s42, v1
    v_lshlrev_b32 v{V_PA}, 2, v{V_PA}
    v_mov_b32 v{V_PB}, 0xffff
    s_mov_b64 exec, 0xffff
    ds_write_b32 v{V_PA}, v{V_PB} offset:{L_LIST}
    s_mov_b64 exec, -1
K2_NOWORK_A:
""")

    def pass2(first):
        for d in range(4):
            k = first + d
            off = d + (16 if first else 0)
            a(f"    v_cmp_lt_i32 vcc, {off}, v{V_REM}")
            a(f"    s_mov_b64 exec, vcc")
            a(f"    v_add_lshl_u32 v{BS + k}, v{BS + k}, v{RK + k}, 2")
            a(f"    ds_write_b32 v{BS + k}, v{V_REC + k} offset:{L_LIST}")
        a("    s_mov_b64 exec, -1")

    a("    s_waitcnt lgkmcnt(0)")
    pass2(0)
    a(f"""
    s_cmp_eq_u32 s{S_HASB}, 0
    s_cbranch_scc1 K2_P2_NOB
""")
    for k in range(4, 8):
        a(f"    ds_bpermute_b32 v{BS + k}, v{AD + k}, v{V_T}")
    a("    s_waitcnt lgkmcnt(0)")
    pass2(4)
    a(f"""
K2_P2_NOB:
    s_waitcnt lgkmcnt(0)
    s_barrier
    s_cmp_eq_u32 s{S_REM}, 0
    s_cbranch_scc1 K2_LOOP_END
    v_lshrrev_b32 v{V_RA}, 3, v1
    v_add_u32 v{V_RA}, s{S_S}, v{V_RA}
    v_lshlrev_b32 v{V_RA}, 2, v{V_RA}
    v_add_u32 v{V_RA}, {L_LIST}, v{V_RA}
""")
    for pp in range(P):
        a(f"    ds_read_u16 v{V_Q + 4 * pp}, v{V_RA} offset:{pp * 64}")
        a(f"    ds_read_u16 v{V_Q + 4 * pp + 2}, v{V_RA} offset:{pp * 64 + 32}")
    a(f"    ds_read_u16 v{V_QVA}, v{V_RA} offset:2")
    a(f"    ds_read_u16 v{V_QVB}, v{V_RA} offset:34")
    for pp in range(P):
        a(f"    v_mov_b32 v{V_Q + 4 * pp + 1}, v{V_COFFA}")
        a(f"    v_mov_b32 v{V_Q + 4 * pp + 3}, v{V_COFFA}")
    a("    s_waitcnt lgkmcnt(0)")
    for pp in range(P):
        if pp > 0:
            a(f"    s_cmp_le_u32 s{S_REM}, {pp}")
            a(f"    s_cbranch_scc1 K2_PRO_DONE")
        xloads(a, V_X + 16 * pp, V_Q + 4 * pp, V_Q + 4 * pp + 2)
    a("K2_PRO_DONE:")
    qreads(a)
    a(f"""
    ds_read_u16 v{V_QVA}, v{V_RA} offset:{64 + 2}
    ds_read_u16 v{V_QVB}, v{V_RA} offset:{64 + 34}
    ds_read_u16 v{V_IDXA}, v{V_RA} offset:{P * 64}
    ds_read_u16 v{V_IDXB}, v{V_RA} offset:{P * 64 + 32}
    s_sub_u32 s{S_REM}, s{S_REM}, 1
    s_mov_b32 s{S_PEND}, s{S_S}
    s_mov_b32 s{S_SEL}, {P}
    s_branch K2_NEXTNODE
K2_LOOP:
""")
    for s in range(P):
        step(a, s)
    a("    s_branch K2_STEP0")
    for s in range(P):
        step_ool(a, s)

    T0 = V_REC
    a(f"""
K2_FLUSH:
    s_lshl_b32 s{S_T}, s{S_NODE}, 9
    s_add_u32 s{S_T}, s{S_T}, {L_AGG}
    s_and_b32 s40, s{S_NODE}, 7
    s_lshl_b32 s40, s40, 4
    s_or_b32 s{S_T}, s{S_T}, s40
    v_xor_b32 v{V_APX}, s{S_T}, v{V_FK}
    s_nop 3
    v_cvt_pk_bf16_f32 v{T0 + 0}, v{V_D0 + 0}, v{V_D0 + 1}
    v_cvt_pk_bf16_f32 v{T0 + 1}, v{V_D0 + 2}, v{V_D0 + 3}
    v_cvt_pk_bf16_f32 v{T0 + 2}, v{V_D1 + 0}, v{V_D1 + 1}
    v_cvt_pk_bf16_f32 v{T0 + 3}, v{V_D1 + 2}, v{V_D1 + 3}
    s_mov_b64 exec, s[{S_VALID}:{S_VALID + 1}]
    ds_write_b64 v{V_APX}, {vr(T0, 2)}
    ds_write_b64 v{V_APX}, {vr(T0 + 2, 2)} offset:128
    s_mov_b64 exec, -1
K2_NEXTNODE:
    s_mov_b32 s{S_NEND}, -1
    s_cmp_eq_u64 s[{S_M}:{S_M + 1}], 0
    s_cbranch_scc1 K2_FLUSH_RET
    s_ff1_i32_b64 s{S_NODE}, s[{S_M}:{S_M + 1}]
    s_bitset0_b64 s[{S_M}:{S_M + 1}], s{S_NODE}
    v_readlane_b32 s{S_NEND}, v{V_NEND}, s{S_NODE}
    s_cmp_lg_u32 s{S_ROUND}, 0
    s_cbranch_scc1 K2_INIT_RMW
""")
    for i in range(4):
        a(f"    v_mov_b64 {vr(V_D0 + 2 * i, 2)}, 0")
    a(f"""
K2_INIT_DONE:
    s_nop 1
    s_cmp_le_u32 s{S_NEND}, s{S_PEND}
    s_cbranch_scc1 K2_FLUSH_AGAIN
K2_FLUSH_RET:
""")
    for s in range(P):
        a(f"    s_cmp_eq_u32 s{S_SEL}, {s}")
        a(f"    s_cbranch_scc1 K2_RET{s}")
    a("    s_branch K2_LOOP")
    a("K2_FLUSH_AGAIN:")
    for s in range(P - 1):
        a(f"    s_cmp_eq_u32 s{S_SEL}, {s}")
        a(f"    s_cbranch_scc1 K2_BND{s}")
    a(f"    s_branch K2_BND{P - 1}")
    a(f"""
K2_INIT_RMW:
    s_lshl_b32 s{S_T}, s{S_NODE}, 9
    s_add_u32 s{S_T}, s{S_T}, {L_AGG}
    s_and_b32 s40, s{S_NODE}, 7
    s_lshl_b32 s40, s40, 4
    s_or_b32 s{S_T}, s{S_T}, s40
    v_xor_b32 v{V_APX}, s{S_T}, v{V_FK}
    ds_read_b64 {vr(T0, 2)}, v{V_APX}
    ds_read_b64 {vr(T0 + 2, 2)}, v{V_APX} offset:128
    s_waitcnt lgkmcnt(0)
""")
    for i in range(4):
        a(f"    v_lshlrev_b32 v{V_D0 + 2 * i}, 16, v{T0 + i}")
        a(f"    v_and_b32 v{V_D0 + 2 * i + 1}, 0xffff0000, v{T0 + i}")
    a(f"""
    s_branch K2_INIT_DONE

K2_LOOP_END:
    s_waitcnt vmcnt(0) lgkmcnt(0)
    s_barrier
    v_mov_b32 v{V_PA}, {L_FLAG}
    ds_read_b32 v{V_PB}, v{V_PA}
    s_waitcnt lgkmcnt(0)
    v_readfirstlane_b32 s40, v{V_PB}
    s_nop 3
    s_cmp_eq_u32 s40, 0
    s_cbranch_scc1 K2_EPI
    s_add_u32 s{S_ROUND}, s{S_ROUND}, 1
    s_cmp_gt_u32 s{S_ROUND}, 2100
    s_cbranch_scc1 K2_EPI
    s_barrier
    v_and_b32 v39, 127, v0
    v_lshlrev_b32 v39, 2, v39
    v_mov_b32 v38, 0
    ds_write_b32 v39, v38
    v_add_u32 v{V_SEG}, 128, v{V_SEG}
    v_subrev_u32 v{V_REM}, 32, v{V_REM}
""")
    seg_loads(a, "rn")
    seg_load_b(a, "rn")
    a(f"""
    s_waitcnt lgkmcnt(0)
    s_barrier
    s_branch K2_PASS1

K2_EPI:
    v_and_b32 v{V_PA}, 15, v1
    v_lshrrev_b32 v{V_PB}, 4, v1
    v_and_b32 v{V_T}, 7, v1
    v_xor_b32 v{V_T}, v{V_PB}, v{V_T}
    v_lshlrev_b32 v{V_T}, 4, v{V_T}
    v_lshl_or_b32 v{V_T}, v{V_PA}, 9, v{V_T}
    s_lshr_b32 s47, s{S_W}, 3
    s_lshl_b32 s48, s47, 14
    s_add_u32 s48, s48, {L_AGG}
    v_add_u32 v{V_T}, s48, v{V_T}
    v_xor_b32 v{V_AP}, 64, v{V_T}
""")
    EB = V_Q
    idx = 0
    order = []
    for tt in range(2):
        for par in range(2):
            for ks in range(4):
                ad = V_T if ks % 2 == 0 else V_AP
                a(f"    ds_read_b128 {vr(EB + idx * 4, 4)}, v{ad} offset:{tt * 8192 + par * 256 + (ks >> 1) * 128}")
                order.append((tt, par, ks, EB + idx * 4))
                idx += 1
    a("    s_waitcnt lgkmcnt(0)")
    for j in range(8):
        for tt in range(2):
            _, par, ks, reg = order[tt * 8 + j]
            d = V_D0 + 4 * tt
            c = "0" if j == 0 else vr(d, 4)
            a(f"    v_mfma_f32_16x16x32_bf16 {vr(d, 4)}, {vr(V_WV + 4 * ks, 4)}, {vr(reg, 4)}, {c}")
    a("    s_nop 7")
    for tt in range(2):
        a(f"    v_cvt_pk_bf16_f32 v{V_A + 2 * tt}, v{V_D0 + 4 * tt}, v{V_D0 + 4 * tt + 1}")
        a(f"    v_cvt_pk_bf16_f32 v{V_A + 1 + 2 * tt}, v{V_D0 + 4 * tt + 2}, v{V_D0 + 4 * tt + 3}")
        a(f"    ds_write_b64 v{V_TMP + 6}, {vr(V_A + 2 * tt, 2)} offset:{L_XT + tt * 4096}")
    a(f"""
    v_lshrrev_b32 v33, 4, v0
    v_and_b32 v34, 15, v0
    v_lshlrev_b32 v35, 16, v33
    v_lshl_or_b32 v35, v34, 4, v35
    s_lshl_b32 s41, s{S_KEY}, 8
    v_add_u32 v35, s41, v35
    s_waitcnt lgkmcnt(0)
    s_barrier
    ds_read_b128 v[40:43], v{V_TMP + 7} offset:{L_XT}
    s_waitcnt lgkmcnt(0)
    buffer_store_dwordx4 v[40:43], v35, s[{S_OUT}:{S_OUT + 3}], 0 offen
K2_END:
    s_endpgm
""")


HEADER = f"""; Kernarg layout for this problem (64 bytes, ptrs only, base s[0:1]):
; @launch kernel={K1} grid=(272,1,1) block=(256,1,1) lds=8320
; @launch kernel={MAIN} grid=(256,1,1) block=({NW * 64},1,1) lds={L_END}
.amdgcn_target "amdgcn-amd-amdhsa--gfx950"
.text
"""


def kd(name, vgpr, sgpr):
    acc = (vgpr + 3) // 4 * 4
    return f"""
.p2align 6
.amdhsa_kernel {name}
  .amdhsa_next_free_vgpr {vgpr}
  .amdhsa_next_free_sgpr {sgpr}
  .amdhsa_accum_offset {acc}
  .amdhsa_group_segment_fixed_size 0
  .amdhsa_kernarg_size 64
  .amdhsa_user_sgpr_count 2
  .amdhsa_user_sgpr_kernarg_segment_ptr 1
  .amdhsa_system_sgpr_workgroup_id_x 1
  .amdhsa_float_denorm_mode_32 3
.end_amdhsa_kernel
"""


def generate(opt=None):
    opt = opt or {}
    a = Asm()
    a(HEADER)
    gen_k1(a, opt)
    gen_k2(a, opt)
    a('.section .rodata,"a"')
    a(kd(K1, 64, 48))
    a(kd(MAIN, 128, 64))
    return a.text()


if __name__ == "__main__":
    out = sys.argv[1] if len(sys.argv) > 1 else "gather_scatter__kernel_systems_refs_featgraph__graph.s"
    open(out, "w").write(generate())
    print("wrote", out)
```

```python
import math
import sys

OPT = {}
FL = ["", " sc1", " nt", " sc0 sc1", " sc0 sc1 nt"]
MAIN = "gather_scatter__kernel_systems_refs_featgraph__graph_kernel"
K1 = "gs_bucket_kernel"

N_NODES = 12500
N_EDGES = 400000
CHUNK = 1564
REC_STRIDE = 6400
REC_OFF = 0
TAB_OFF = 0x190000
WF_OFF = 0x1D0000
WS_SIZE = 0x1E0000

L_CNT = 0
L_FLAG = 256
L_AGG = 1024
L_QT = 17408
L_XT = 33792
L_LIST = 50176
L_WV = 84224
L_END = 116992

NW = 16
P = 3

QSCALE = -math.log2(math.e) / math.sqrt(128.0)


def f32bits(x):
    import struct
    return struct.unpack("<I", struct.pack("<f", x))[0]


class Asm:
    def __init__(self):
        self.lines = []

    def __call__(self, text=""):
        for ln in text.strip("\n").split("\n"):
            self.lines.append(ln.rstrip())

    def text(self):
        return "\n".join(self.lines) + "\n"


def vr(a, n):
    return f"v[{a}:{a + n - 1}]"


def srd(a, dst, lo, hi, nrec, stride=0):
    a(f"    s_mov_b32 s{dst}, s{lo}")
    a(f"    s_and_b32 s{dst + 1}, s{hi}, 0xffff")
    if stride:
        a(f"    s_or_b32 s{dst + 1}, s{dst + 1}, {hex(stride << 16)}")
    a(f"    s_mov_b32 s{dst + 2}, {hex(nrec)}")
    a(f"    s_mov_b32 s{dst + 3}, 0x20000")


DIAG_OFF = 0x400000
S_ST = 60


def stamp(a, opt, i, real=False):
    if not opt.get("diag"):
        return
    op = "s_memrealtime" if real else "s_memtime"
    a(f"    {op} s[{S_ST + 2 * i}:{S_ST + 2 * i + 1}]")
    a("    s_waitcnt lgkmcnt(0)")


def dump_stamps(a, opt, n, ptr_lo, ptr_hi, waves_per_wg, base):
    if not opt.get("diag"):
        return
    a(f"    s_mov_b32 s52, s{ptr_lo}")
    a(f"    s_and_b32 s53, s{ptr_hi}, 0xffff")
    a(f"    s_mov_b32 s54, 0x1000000")
    a(f"    s_mov_b32 s55, 0x20000")
    a(f"    v_mov_b32 v2, 0")
    for i in range(n):
        a(f"    v_writelane_b32 v2, s{S_ST + 2 * i}, {i}")
    a(f"    v_lshrrev_b32 v3, 6, v0")
    a(f"    s_mul_i32 s56, s2, {waves_per_wg}")
    a(f"    v_add_u32 v3, s56, v3")
    a(f"    v_lshlrev_b32 v3, 6, v3")
    a(f"    v_and_b32 v4, 63, v0")
    a(f"    v_lshl_add_u32 v3, v4, 2, v3")
    a(f"    v_add_u32 v3, {hex(base)}, v3")
    a(f"    s_mov_b64 exec, 0xffff")
    a(f"    buffer_store_dword v2, v3, s[52:55], 0 offen")
    a(f"    s_mov_b64 exec, -1")


def scan64(a, reg):
    for ctl in ("row_shr:1", "row_shr:2", "row_shr:4", "row_shr:8"):
        a(f"    s_nop 1")
        a(f"    v_add_u32_dpp v{reg}, v{reg}, v{reg} {ctl} row_mask:0xf bank_mask:0xf bound_ctrl:1")
    a(f"    s_nop 1")
    a(f"    v_add_u32_dpp v{reg}, v{reg}, v{reg} row_bcast:15 row_mask:0xa bank_mask:0xf")
    a(f"    s_nop 1")
    a(f"    v_add_u32_dpp v{reg}, v{reg}, v{reg} row_bcast:31 row_mask:0xc bank_mask:0xf")


def k1_prefetch(a, opt, where):
    if opt.get("pfpos", 0) != where:
        return
    n = opt.get("pf", 0)
    if n:
        srd(a, 40, 34, 35, N_NODES * 256)
        a(f"""
    s_lshr_b32 s38, s2, 3
    s_mul_i32 s38, s38, {782 * 128}
    v_lshlrev_b32 v64, 7, v0
    v_add_u32 v64, s38, v64
""")
        for i in range(n):
            if i:
                a(f"    v_add_u32 v64, 0x8000, v64")
            if i == 3:
                a(f"    v_cmp_gt_u32 vcc, {782 - 768}, v0")
                a(f"    s_mov_b64 exec, vcc")
                a(f"    s_cbranch_execz K1_PF_DONE")
            a(f"    buffer_load_dword v{65 + i}, v64, s[40:43], 0 offen")
        if n > 3:
            a("K1_PF_DONE:")
            a("    s_mov_b64 exec, -1")
    if opt.get("pfm"):
        srd(a, 40, 34, 35, N_NODES * 256)
        a(f"""
    s_mul_i32 s38, s2, {98 * 128}
    v_lshlrev_b32 v64, 7, v0
    v_add_u32 v64, s38, v64
    v_mov_b32 v66, 0x7ffffff0
    v_cmp_gt_u32 vcc, 98, v0
    s_nop 1
    v_cndmask_b32 v64, v66, v64, vcc
    buffer_load_dword v65, v64, s[40:43], 0 offen
""")
    if opt.get("codepf"):
        a(f"""
    s_getpc_b64 s[44:45]
K1_PC:
    s_add_u32 s44, s44, {MAIN}-K1_PC
    s_addc_u32 s45, s45, 0
    v_and_b32 v70, 63, v0
    v_lshlrev_b32 v70, 7, v70
    v_min_u32 v70, K2_END-{MAIN}, v70
    global_load_dword v71, v70, s[44:45]
""")
    if opt.get("touch"):
        srd(a, 40, 36, 37, N_NODES * 256)
        a(f"""
    v_and_b32 v72, 1, v0
    v_lshlrev_b32 v72, 21, v72
    buffer_load_dword v73, v72, s[40:43], 0 offen
""")
        srd(a, 40, 34, 35, N_NODES * 256)
        a(f"""
    buffer_load_dword v74, v72, s[40:43], 0 offen
""")

def gen_k1(a, opt):
    a(f"""
.globl {K1}
.p2align 8
.type {K1},@function
{K1}:
    s_cmp_ge_u32 s2, 272
    s_cbranch_scc1 K1_END
    s_load_dwordx4 s[4:7], s[0:1], 8
    s_load_dwordx4 s[8:11], s[0:1], 24
    s_load_dwordx2 s[12:13], s[0:1], 56
    s_load_dwordx2 s[34:35], s[0:1], 0
    s_load_dwordx2 s[36:37], s[0:1], 40
    s_cmp_ge_u32 s2, 256
    s_cbranch_scc1 K1_WPREP
""")
    stamp(a, opt, 0, real=True)
    stamp(a, opt, 1)
    a(f"""
    v_lshlrev_b32 v1, 2, v0
    v_mov_b32 v2, 0
    ds_write_b32 v1, v2
    s_mul_i32 s14, s2, {CHUNK * 4}
    v_lshlrev_b32 v3, 4, v0
    v_add_u32 v4, s14, v3
    v_add_u32 v5, 0x1000, v4
    s_movk_i32 s15, {(CHUNK - 1024) // 4}
    s_cmp_eq_u32 s2, 255
    s_cselect_b32 s15, {(N_EDGES - 255 * CHUNK - 1024) // 4}, s15
    s_and_b32 s28, s2, 7
    s_lshl_b32 s28, s28, 5
    s_lshr_b32 s29, s2, 3
    s_add_u32 s28, s28, s29
    v_mov_b32 v6, 1
    v_cmp_gt_u32 vcc, s15, v0
    s_mov_b64 s[32:33], vcc
    s_waitcnt lgkmcnt(0)
""")
    srd(a, 16, 4, 5, N_EDGES * 4)
    srd(a, 20, 6, 7, N_EDGES * 4)
    srd(a, 24, 12, 13, WS_SIZE)
    a(f"""
    buffer_load_dwordx4 v[8:11], v4, s[20:23], 0 offen
    buffer_load_dwordx4 v[12:15], v4, s[16:19], 0 offen
    s_mov_b64 exec, s[32:33]
    s_cbranch_execz K1_A
    buffer_load_dwordx4 v[16:19], v5, s[20:23], 0 offen
    buffer_load_dwordx4 v[20:23], v5, s[16:19], 0 offen
K1_A:
    s_mov_b64 exec, -1
""")
    npf0 = 0
    if opt.get("pfpos", 0) == 0:
        npf0 = opt.get("pf", 0) + (1 if opt.get("codepf") else 0) + (2 if opt.get("touch") else 0) + (1 if opt.get("pfm") else 0)
    k1_prefetch(a, opt, 0)
    if npf0 and opt.get("pf", 0) > 3:
        npf0 -= 1
    a(f"""
    s_barrier
    s_waitcnt vmcnt({npf0})
""")
    k1_prefetch(a, opt, 1)
    stamp(a, opt, 2)

    def edges(dbase, sbase, abase, rbase):
        for e in range(4):
            a(f"    v_lshlrev_b32_sdwa v{abase + e}, 2, v{dbase + e} dst_sel:DWORD dst_unused:UNUSED_PAD src0_sel:DWORD src1_sel:BYTE_0")
            a(f"    ds_add_rtn_u32 v{rbase + e}, v{abase + e}, v6")
        for e in range(4):
            a(f"    v_lshrrev_b32 v7, 8, v{dbase + e}")
            a(f"    v_lshl_or_b32 v{sbase + e}, v7, 24, v{sbase + e}")
            a(f"    v_and_b32 v7, 7, v7")
            a(f"    v_lshl_or_b32 v{sbase + e}, v7, 20, v{sbase + e}")

    edges(8, 12, 24, 32)
    a("""
    s_mov_b64 exec, s[32:33]
    s_cbranch_execz K1_B
""")
    edges(16, 20, 28, 36)
    a("""
K1_B:
    s_mov_b64 exec, -1
    s_waitcnt lgkmcnt(0)
    s_barrier
""")
    stamp(a, opt, 3)
    a("""
    v_and_b32 v48, 63, v0
    v_lshlrev_b32 v48, 4, v48
    ds_read_b128 v[52:55], v48
    ds_read_b32 v56, v1
    s_waitcnt lgkmcnt(0)
    v_add_u32 v49, v52, v53
    v_add_u32 v50, v49, v54
    v_add_u32 v51, v50, v55
    v_mov_b32 v57, v51
""")
    scan64(a, 57)
    a(f"""
    v_sub_u32 v58, v57, v51
    v_add_u32 v59, v58, v52
    v_add_u32 v60, v58, v49
    v_add_u32 v61, v58, v50
    ds_write_b128 v48, v[58:61] offset:1024
""")
    for e in range(4):
        a(f"    ds_read_b32 v{40 + e}, v{24 + e} offset:1024")
    a("    ds_read_b32 v62, v1 offset:1024")
    a("""
    s_mov_b64 exec, s[32:33]
    s_cbranch_execz K1_C
""")
    for e in range(4):
        a(f"    ds_read_b32 v{44 + e}, v{28 + e} offset:1024")
    a("    s_waitcnt lgkmcnt(0)")
    for e in range(4):
        a(f"    v_add_lshl_u32 v{44 + e}, v{44 + e}, v{36 + e}, 2")
        a(f"    ds_write_b32 v{44 + e}, v{20 + e} offset:2048")
    a("""
K1_C:
    s_mov_b64 exec, -1
    s_waitcnt lgkmcnt(0)
""")
    for e in range(4):
        a(f"    v_add_lshl_u32 v{40 + e}, v{40 + e}, v{32 + e}, 2")
        a(f"    ds_write_b32 v{40 + e}, v{12 + e} offset:2048")
    a(f"""
    v_lshl_or_b32 v62, v56, 16, v62
    v_lshlrev_b32 v63, 10, v0
    s_lshl_b32 s29, s28, 2
    s_add_u32 s29, s29, {hex(TAB_OFF)}
    buffer_store_dword v62, v63, s[24:27], s29 offen
    s_mul_i32 s30, s28, {REC_STRIDE}
    v_add_u32 v5, 0x1000, v3
    s_waitcnt lgkmcnt(0)
    s_barrier
    ds_read_b128 v[8:11], v3 offset:2048
    s_mov_b64 exec, s[32:33]
    s_cbranch_execz K1_D
    ds_read_b128 v[12:15], v3 offset:6144
    s_waitcnt lgkmcnt(0)
    buffer_store_dwordx4 v[12:15], v5, s[24:27], s30 offen{FL[opt.get("rst", 0)]}
K1_D:
    s_mov_b64 exec, -1
    s_waitcnt lgkmcnt(0)
    buffer_store_dwordx4 v[8:11], v3, s[24:27], s30 offen{FL[opt.get("rst", 0)]}
""")
    stamp(a, opt, 4)
    if opt.get("diag"):
        a("    s_waitcnt vmcnt(0)")
    stamp(a, opt, 5)
    stamp(a, opt, 6, real=True)
    dump_stamps(a, opt, 7, 12, 13, 4, DIAG_OFF)
    a(f"""
    s_endpgm

K1_WPREP:
    s_sub_u32 s14, s2, 256
    s_lshr_b32 s15, s14, 3
    s_and_b32 s28, s14, 7
    v_and_b32 v1, 15, v0
    v_bfe_u32 v2, v0, 4, 2
    v_lshrrev_b32 v3, 6, v0
    v_lshlrev_b32 v3, 13, v3
    v_lshl_add_u32 v3, v2, 11, v3
    v_lshl_add_u32 v3, v1, 1, v3
    s_lshl_b32 s29, s28, 5
    v_add_u32 v3, s29, v3
    v_lshlrev_b32 v4, 4, v0
    s_lshl_b32 s30, s14, 12
    s_add_u32 s30, s30, {hex(WF_OFF)}
    s_cmp_eq_u32 s15, 0
    s_waitcnt lgkmcnt(0)
    s_cselect_b32 s16, s8, s10
    s_cselect_b32 s17, s9, s11
    s_and_b32 s17, s17, 0xffff
    s_mov_b32 s18, 0x8000
    s_mov_b32 s19, 0x20000
""")
    srd(a, 24, 12, 13, WS_SIZE)
    for j in range(8):
        a(f"    buffer_load_ushort v{8 + j}, v3, s[16:19], 0 offen offset:{j * 256}")
    a("    s_waitcnt vmcnt(0)")
    for j in range(4):
        a(f"    v_lshl_or_b32 v{16 + j}, v{9 + 2 * j}, 16, v{8 + 2 * j}")
    a(f"""
    buffer_store_dwordx4 v[16:19], v4, s[24:27], s30 offen
K1_END:
    s_endpgm
""")


V_IDX = [(2, 4), (116, 118)]
V_COFF = 3
V_SIDX, V_P, V_RA, V_FK, V_NEND = 6, 7, 8, 9, 10
V_QVA, V_QVB = 11, 12
V_SEG = 13
V_PA, V_PB, V_T, V_AP, V_APX = 14, 15, 16, 17, 18
V_REM = 19
V_A = 20
V_D0, V_D1 = 24, 28
V_Q = 32
V_X = 48
V_WV = 96
V_REC = 112
V_GA = 120
V_RA0, V_OOFF, V_GADDR, V_TADDR = 124, 125, 126, 127
NS = 4
S_KEY, S_W, S_ROUND = 3, 10, 11
S_XI, S_XR, S_OUT, S_WS = 12, 16, 20, 24
S_S, S_PEND, S_NEND, S_REM = 28, 29, 30, 31
S_M, S_NODE, S_SEL, S_SPLIT, S_T = 32, 34, 35, 36, 37
S_VALID = 38
S_HASB = 43
S_V, S_MORE, S_THR = 47, 51, 48
S_EX = 52
PT = [2, 4, 6]


def seg_loads(a, tag):
    a(f"""
    buffer_load_dwordx4 {vr(V_REC, 4)}, v{V_SEG}, s[{S_WS}:{S_WS + 3}], 0 offen
""")


def seg_load_b(a, tag):
    a(f"""
    v_cmp_lt_i32 vcc, 16, v{V_REM}
    s_mov_b32 s{S_HASB}, 0
    s_cmp_eq_u64 vcc, 0
    s_cbranch_scc1 K2_NOB_{tag}
    s_mov_b32 s{S_HASB}, 1
    buffer_load_dwordx4 {vr(V_REC + 4, 4)}, v{V_SEG}, s[{S_WS}:{S_WS + 3}], 0 offen offset:64
K2_NOB_{tag}:
""")


def a_setup(a, src):
    a(f"    v_mov_b32_dpp v{V_A + 0}, v{src} quad_perm:[0,1,2,3] row_mask:0xf bank_mask:0x5")
    a(f"    v_mov_b32_dpp v{V_A + 1}, v{src} row_shr:4 row_mask:0xf bank_mask:0xa")
    a(f"    v_mov_b32_dpp v{V_A + 2}, v{src} row_shl:4 row_mask:0xf bank_mask:0x5")
    a(f"    v_mov_b32_dpp v{V_A + 3}, v{src} quad_perm:[0,1,2,3] row_mask:0xf bank_mask:0xa")


def smf(a, X):
    a(f"    v_smfmac_f32_16x16x64_bf16 {vr(V_D0, 4)}, {vr(V_A, 4)}, {vr(X, 8)}, v{V_SIDX}")
    a(f"    v_smfmac_f32_16x16x64_bf16 {vr(V_D1, 4)}, {vr(V_A, 4)}, {vr(X + 8, 8)}, v{V_SIDX}")


def xload(a, X, idx, half):
    if OPT.get("noload"):
        return
    s = f"s[{S_XI}:{S_XI + 3}]"
    a(f"    buffer_load_dwordx4 {vr(X + 4 * half, 4)}, {vr(idx, 2)}, {s}, 0 idxen offen")
    a(f"    buffer_load_dwordx4 {vr(X + 8 + 4 * half, 4)}, {vr(idx, 2)}, {s}, 0 idxen offen offset:128")


def qreads(a):
    a(f"    v_xor_b32 v{V_QVA}, v{V_QVA}, v{V_COFF}")
    a(f"    v_xor_b32 v{V_QVB}, v{V_QVB}, v{V_COFF}")
    a(f"    ds_read_b128 {vr(V_Q + 0, 4)}, v{V_QVA} offset:{L_QT}")
    a(f"    ds_read_b128 {vr(V_Q + 4, 4)}, v{V_QVA} offset:{L_QT + 128}")
    a(f"    ds_read_b128 {vr(V_Q + 8, 4)}, v{V_QVB} offset:{L_QT}")
    a(f"    ds_read_b128 {vr(V_Q + 12, 4)}, v{V_QVB} offset:{L_QT + 128}")


def dots(a, X, lo, hi):
    for i in range(lo, hi):
        if OPT.get("nodots"):
            continue
        xa = X + (i if i < 4 else 8 + i - 4)
        xb = X + 4 + (i if i < 4 else 8 + i - 4)
        ca = "0" if i == 0 else f"v{V_PA}"
        cb = "0" if i == 0 else f"v{V_PB}"
        a(f"    v_dot2_f32_bf16 v{V_PA}, v{xa}, v{V_Q + i}, {ca}")
        a(f"    v_dot2_f32_bf16 v{V_PB}, v{xb}, v{V_Q + 8 + i}, {cb}")


def step(a, s):
    ns = OPT["ns"]
    X = V_X + 16 * s
    ia, ib = V_IDX[0]
    a(f"""
K2_STEP{s}:
    s_cmp_lt_u32 s{S_REM}, {ns - 1}
    s_cbranch_scc1 K2_TAIL{s}
    s_waitcnt vmcnt({4 * (ns - 1)}) lgkmcnt(2)
K2_BACK{s}:
""")
    dots(a, X, 0, 8)
    qreads(a)
    a(f"""
    ds_read_u16 v{V_QVA}, v{V_RA} offset:{(s + 2) * 64 + 2}
    ds_read_u16 v{V_QVB}, v{V_RA} offset:{(s + 2) * 64 + 34}
    v_permlane32_swap_b32 v{V_PA}, v{V_PB}
    s_add_u32 s{S_PEND}, s{S_PEND}, 16
    s_nop 0
    v_permlane16_swap_b32 v{V_PA}, v{V_PB}
    s_nop 1
    v_add_f32_dpp v{V_T}, v{V_PA}, v{V_PA} row_shl:4 row_mask:0xf bank_mask:0x5
    v_add_f32_dpp v{V_T}, v{V_PB}, v{V_PB} row_shr:4 row_mask:0xf bank_mask:0xa
    s_nop 1
    v_add_f32_dpp v{V_T}, v{V_T}, v{V_T} quad_perm:[1,0,3,2] row_mask:0xf bank_mask:0xf
    s_nop 1
    v_add_f32_dpp v{V_T}, v{V_T}, v{V_T} quad_perm:[2,3,0,1] row_mask:0xf bank_mask:0xf
    v_exp_f32 v{V_T}, v{V_T}
    s_nop 0
    v_add_f32 v{V_T}, 1.0, v{V_T}
    v_rcp_f32 v{V_T}, v{V_T}
    s_cmp_le_u32 s{S_NEND}, s{S_PEND}
    v_cvt_pk_bf16_f32 v{V_AP}, v{V_T}, 0
    {"s_nop 0" if OPT.get("nobnd") else f"s_cbranch_scc1 K2_BND{s}"}
    s_nop 0
K2_RET{s}:
""")
    if not OPT.get("nopv"):
        a_setup(a, V_AP)
        a("    s_nop 1")
        smf(a, X)
    a(f"""
    s_cmp_lt_u32 s{S_REM}, {ns}
    s_cbranch_scc1 K2_SKIP{s}
    s_waitcnt lgkmcnt(6)
""")
    xload(a, X, ia, 0)
    xload(a, X, ib, 1)
    a(f"""
    ds_read_u16 v{ia}, v{V_RA} offset:{(s + ns + 1) * 64}
    ds_read_u16 v{ib}, v{V_RA} offset:{(s + ns + 1) * 64 + 32}
K2_SKIP{s}:
""")
    if s == ns - 1:
        a(f"    v_add_u32 v{V_RA}, {ns * 64}, v{V_RA}")
    a(f"""
    s_sub_u32 s{S_REM}, s{S_REM}, 1
    s_cbranch_scc1 K2_LOOP_END
""")
    if OPT.get("prio"):
        a(f"""
    s_cmp_eq_u32 s{S_REM}, s{S_THR}
    s_cbranch_scc1 K2_PRIO{s}
K2_PRIOB{s}:
""")


def step_ool(a, s):
    X = V_X + 16 * s
    a(f"""
K2_TAIL{s}:
""")
    for r in range(OPT["ns"] - 2, 0, -1):
        a(f"""
    s_cmp_eq_u32 s{S_REM}, {r}
    s_cbranch_scc0 K2_TAIL{s}_{r}
    s_waitcnt vmcnt({4 * r}) lgkmcnt(0)
    s_branch K2_BACK{s}
K2_TAIL{s}_{r}:
""")
    a(f"""
    s_waitcnt vmcnt(0) lgkmcnt(0)
    s_branch K2_BACK{s}
K2_BND{s}:
    s_sub_u32 s{S_SPLIT}, s{S_NEND}, s{S_PEND}
    s_add_u32 s{S_SPLIT}, s{S_SPLIT}, 16
    v_cmp_gt_u32 vcc, s{S_SPLIT}, v{V_P}
    s_mov_b32 s{S_SEL}, {s}
    s_nop 0
    v_cndmask_b32 v{V_APX}, 0, v{V_AP}, vcc
    v_cndmask_b32_e64 v{V_AP}, v{V_AP}, 0, vcc
    s_nop 1
""")
    a_setup(a, V_APX)
    a("    s_nop 1")
    smf(a, X)
    a("    s_branch K2_FLUSH")
    if OPT.get("prio"):
        a(f"""
K2_PRIO{s}:
    s_cmp_eq_u32 s{S_THR}, {PT[2] - 1}
    s_cbranch_scc0 K2_PRIO{s}_B
    s_setprio 2
    s_mov_b32 s{S_THR}, {PT[1] - 1}
    s_branch K2_PRIOB{s}
K2_PRIO{s}_B:
    s_cmp_eq_u32 s{S_THR}, {PT[1] - 1}
    s_cbranch_scc0 K2_PRIO{s}_C
    s_setprio 1
    s_mov_b32 s{S_THR}, {PT[0] - 1}
    s_branch K2_PRIOB{s}
K2_PRIO{s}_C:
    s_setprio 0
    s_mov_b32 s{S_THR}, -1
    s_branch K2_PRIOB{s}
""")


PARK_N = [0]


def park(a):
    n = PARK_N[0]
    PARK_N[0] += 1
    a(f"""
    s_cmp_lt_u32 s{S_W}, 8
    s_cbranch_scc1 K2_NOPARK{n}
    s_cmp_lg_u32 s{S_ROUND}, 0
    s_cbranch_scc1 K2_NOPARK{n}
    s_and_b32 s40, s{S_W}, 7
    s_lshl_b32 s40, s40, 12
    s_add_u32 s40, s40, {L_WV}
    v_lshlrev_b32 v{V_PA}, 4, v1
    v_add_u32 v{V_PA}, s40, v{V_PA}
""")
    for ks in range(4):
        a(f"    ds_write_b128 v{V_PA}, {vr(V_WV + 4 * ks, 4)} offset:{ks * 1024}")
    a(f"K2_NOPARK{n}:")


def gen_k2(a, opt):
    ws = f"s[{S_WS}:{S_WS + 3}]"
    a(f"""
.globl {MAIN}
.p2align 8
.type {MAIN},@function
{MAIN}:
    s_cmp_ge_u32 s2, 256
    s_cbranch_scc1 K2_END
    s_load_dwordx2 s[8:9], s[0:1], 56
    s_load_dwordx2 s[4:5], s[0:1], 0
    s_load_dwordx2 s[6:7], s[0:1], 40
""")
    stamp(a, opt, 0, real=True)
    stamp(a, opt, 1)
    a(f"""
    v_lshrrev_b32 v1, 6, v0
    s_and_b32 s{S_KEY}, s2, 7
    s_lshl_b32 s{S_KEY}, s{S_KEY}, 5
    v_readfirstlane_b32 s{S_W}, v1
    s_lshr_b32 s40, s2, 3
    s_add_u32 s{S_KEY}, s{S_KEY}, s40
    v_and_b32 v32, 0x3fc, v0
    s_lshl_b32 s42, s{S_KEY}, 10
    s_add_u32 s42, s42, {hex(TAB_OFF)}
    s_lshl_b32 s41, s{S_KEY}, 8
    v_lshrrev_b32 v33, 4, v0
    v_and_b32 v34, 15, v0
    v_lshlrev_b32 v35, 16, v33
    v_lshl_or_b32 v35, v34, 4, v35
    v_add_u32 v{V_OOFF}, s41, v35
    s_waitcnt lgkmcnt(0)
""")
    srd(a, S_WS, 8, 9, WS_SIZE)
    a(f"    buffer_load_dword v37, v32, {ws}, s42 offen")
    srd(a, S_XR, 4, 5, N_NODES * 256)
    a(f"""
    buffer_load_dwordx4 v[40:43], v{V_OOFF}, s[{S_XR}:{S_XR + 3}], 0 offen
    v_and_b32 v1, 63, v0
    v_lshlrev_b32 v36, 4, v1
    s_lshl_b32 s45, s{S_W}, 12
    s_add_u32 s45, s45, {hex(WF_OFF)}
    s_cmp_ge_u32 s{S_W}, 8
    s_cbranch_scc1 K2_NOWQ
""")
    for ks in range(4):
        a(f"    buffer_load_dwordx4 {vr(V_X + 4 * ks, 4)}, v36, {ws}, s45 offen offset:{ks * 1024}")
    a(f"""
K2_NOWQ:
    v_lshrrev_b32 v38, 2, v0
    v_mul_u32_u24 v{V_SEG}, {REC_STRIDE}, v38
    v_and_b32 v44, 3, v0
    v_lshl_add_u32 v{V_SEG}, v44, 4, v{V_SEG}
    v_lshlrev_b32 v{V_REM}, 2, v44
    v_mov_b64 v[44:45], 0
    v_mov_b64 v[46:47], 0
    v_lshlrev_b32 v38, 4, v0
    ds_write_b128 v38, v[44:47] offset:{L_AGG}
    v_and_b32 v39, 127, v0
    v_lshlrev_b32 v39, 2, v39
    ds_write_b32 v39, v44
    v_and_b32 v38, 15, v33
    v_xor_b32 v38, v34, v38
    v_lshlrev_b32 v38, 4, v38
    v_lshl_or_b32 v{V_TADDR}, v33, 8, v38
    s_and_b32 s44, s{S_W}, 7
    v_and_b32 v32, 15, v1
    v_lshrrev_b32 v33, 4, v1
    s_lshl_b32 s49, s44, 1
    v_lshrrev_b32 v38, 1, v33
    v_add_u32 v38, s49, v38
    v_and_b32 v39, 1, v33
    v_lshlrev_b32 v39, 3, v39
    v_lshl_or_b32 v39, v32, 8, v39
    s_cmp_lt_u32 s{S_W}, 8
    s_cselect_b32 s49, 7, 15
    v_and_b32 v34, s49, v32
    v_xor_b32 v38, v38, v34
    v_lshl_or_b32 v{V_GADDR}, v38, 4, v39
    v_xor_b32 v38, v33, v32
    v_lshlrev_b32 v38, 4, v38
    v_lshl_or_b32 v{V_GA}, v32, 8, v38
    v_xor_b32 v{V_GA + 1}, 64, v{V_GA}
    v_xor_b32 v{V_GA + 2}, 0x80, v{V_GA}
    v_xor_b32 v{V_GA + 3}, 0xc0, v{V_GA}
    ; lane constants of the main loop
    v_and_b32 v{V_COFF}, 7, v1
    v_and_b32 v{V_SIDX}, 3, v1
    v_lshlrev_b32 v{V_COFF}, 4, v{V_COFF}
    v_mul_u32_u24 v{V_SIDX}, 0x1111, v{V_SIDX}
    v_mov_b32 v5, v{V_COFF}
    v_lshlrev_b32 v{V_P}, 2, v33
    v_bfe_u32 v39, v1, 2, 1
    v_lshl_add_u32 v{V_P}, v39, 1, v{V_P}
    v_bfe_u32 v39, v1, 3, 1
    v_add_u32 v{V_P}, v39, v{V_P}
    v_lshrrev_b32 v39, 5, v1
    v_lshl_or_b32 v{V_FK}, v39, 7, v{V_COFF}
    v_and_b32 v39, 1, v33
    v_lshl_or_b32 v{V_FK}, v39, 3, v{V_FK}
    v_lshrrev_b32 v{V_RA0}, 3, v1
    v_lshlrev_b32 v{V_RA0}, 2, v{V_RA0}
    v_add_u32 v{V_RA0}, {L_LIST}, v{V_RA0}
    v_mov_b64 {vr(V_A, 2)}, 0
    v_mov_b64 {vr(V_A + 2, 2)}, 0
""")
    srd(a, S_XI, 4, 5, N_NODES, stride=256)
    srd(a, S_OUT, 6, 7, N_NODES * 256)
    a(f"""
    s_mov_b32 s{S_ROUND}, 0
    s_mov_b32 s{S_VALID}, 0x00ff00ff
    s_mov_b32 s{S_VALID + 1}, 0x00ff00ff
    s_and_b32 s{S_V}, s{S_W}, 3
    s_lshl_b32 s{S_V}, s{S_V}, 2
    s_lshr_b32 s40, s{S_W}, 2
    s_add_u32 s{S_V}, s{S_V}, s40
    s_cmp_ge_u32 s{S_W}, 8
    s_cbranch_scc1 K2_TABB
    s_waitcnt vmcnt(5)
    s_branch K2_TABC
K2_TABB:
    s_waitcnt vmcnt(1)
K2_TABC:
""")
    stamp(a, opt, 2)
    a(f"""
    v_and_b32 v38, 0xffff, v37
    v_lshrrev_b32 v37, 16, v37
    v_lshl_add_u32 v{V_SEG}, v38, 2, v{V_SEG}
    v_sub_u32 v{V_REM}, v37, v{V_REM}
""")
    seg_loads(a, "r0")
    a(f"""
    s_cmp_lt_u32 s{S_W}, 8
    s_cbranch_scc1 K2_NOWV
""")
    for ks in range(4):
        a(f"    buffer_load_dwordx4 {vr(V_WV + 4 * ks, 4)}, v36, {ws}, s45 offen offset:{ks * 1024}")
    a(f"""
K2_NOWV:
    s_waitcnt vmcnt(5)
    ds_write_b128 v{V_TADDR}, v[40:43] offset:{L_XT}
""")
    seg_load_b(a, "r0")
    a(f"""
    s_waitcnt lgkmcnt(0)
    s_barrier
""")
    stamp(a, opt, 3)
    a(f"""
    s_cmp_ge_u32 s{S_W}, 8
    s_cbranch_scc1 {"K2_PF" if opt.get("pf2") else "K2_PASS1"}
""")
    B0 = V_X + 16
    QD = [V_D0, V_D1, 96, 100]
    for half in range(2):
        for t2 in range(2):
            tt = half * 2 + t2
            for ks in range(4):
                a(f"    ds_read_b128 {vr(B0 + (t2 * 4 + ks) * 4, 4)}, v{V_GA + ks} offset:{L_XT + tt * 4096}")
        if half == 0:
            a("    s_waitcnt vmcnt(1)")
            a(f"    s_mov_b32 s50, {hex(f32bits(QSCALE))}")
        for t2 in range(2):
            tt = half * 2 + t2
            a(f"    s_waitcnt lgkmcnt({4 * (1 - t2)})")
            for ks in range(4):
                c = "0" if ks == 0 else vr(QD[tt], 4)
                a(f"    v_mfma_f32_16x16x32_bf16 {vr(QD[tt], 4)}, {vr(V_X + 4 * ks, 4)}, {vr(B0 + (t2 * 4 + ks) * 4, 4)}, {c}")
    a("    s_nop 3")
    for tt in range(4):
        if tt == 3:
            a("    s_nop 1")
        for i in range(4):
            a(f"    v_mul_f32 v{QD[tt] + i}, s50, v{QD[tt] + i}")
        a(f"    v_cvt_pk_bf16_f32 v{104 + 2 * tt}, v{QD[tt]}, v{QD[tt] + 1}")
        a(f"    v_cvt_pk_bf16_f32 v{105 + 2 * tt}, v{QD[tt] + 2}, v{QD[tt] + 3}")
        a(f"    ds_write_b64 v{V_GADDR}, {vr(104 + 2 * tt, 2)} offset:{L_QT + tt * 4096}")
    npf = opt.get("pf2", 0)
    npi = (npf + 7) // 8
    if npf:
        a(f"""
    s_branch K2_PASS1
K2_PF:
    s_lshr_b32 s40, s2, 3
    s_mul_i32 s40, s40, {782 * 128}
    s_sub_u32 s41, s{S_W}, 8
    s_lshl_b32 s46, s41, 13
    s_add_u32 s40, s40, s46
    v_lshlrev_b32 v38, 7, v1
    v_add_u32 v38, s40, v38
""")
        for i in range(npi):
            a(f"""
    s_cmp_lt_u32 s41, {npf - 8 * i}
    s_cselect_b32 s46, 0, 0x40000000
    v_add_u32 v39, s46, v38
    buffer_load_dword v{95 - i}, v39, s[{S_XR}:{S_XR + 3}], 0 offen
""")
            if i + 1 < npi:
                a("    v_add_u32 v38, 0x10000, v38")
    AD, RK, BS = 64, 72, 80
    a(f"""
K2_PASS1:
    v_mov_b32 v{V_T}, 1
    v_lshlrev_b32 v{V_PA}, 2, v1
    v_mov_b32 v{V_APX}, {L_FLAG}
""")
    for pp in range(OPT["ns"] if OPT["ns"] > 1 else 0):
        a(f"    v_mov_b32 v{V_Q + 4 * pp + 1}, v{V_COFF}")
        a(f"    v_mov_b32 v{V_Q + 4 * pp + 3}, v{V_COFF}")
    if opt.get("pf2"):
        a(f"""
    s_cmp_lt_u32 s{S_W}, 8
    s_cbranch_scc1 K2_SW_0
    s_cmp_lg_u32 s{S_ROUND}, 0
    s_cbranch_scc1 K2_SW_0
    s_waitcnt vmcnt({npi})
    s_branch K2_SW_1
K2_SW_0:
    s_waitcnt vmcnt(0)
K2_SW_1:
""")
    else:
        a("    s_waitcnt vmcnt(0)")
    stamp(a, opt, 4)
    for d in range(4):
        a(f"    v_cmp_lt_i32 s[{S_EX + 2 * d}:{S_EX + 2 * d + 1}], {d}, v{V_REM}")
    for d in range(4):
        a(f"    s_mov_b64 exec, s[{S_EX + 2 * d}:{S_EX + 2 * d + 1}]")
        a(f"    v_lshlrev_b32_sdwa v{AD + d}, 2, v{V_REC + d} dst_sel:DWORD dst_unused:UNUSED_PAD src0_sel:DWORD src1_sel:BYTE_3")
        a(f"    ds_add_rtn_u32 v{RK + d}, v{AD + d}, v{V_T}")
    a(f"""
    s_mov_b64 exec, -1
    s_cmp_eq_u32 s{S_HASB}, 0
    s_cbranch_scc1 K2_P1_NOB
""")
    for d in range(4):
        k = 4 + d
        a(f"    v_cmp_lt_i32 vcc, {16 + d}, v{V_REM}")
        a(f"    s_mov_b64 exec, vcc")
        a(f"    v_lshlrev_b32_sdwa v{AD + k}, 2, v{V_REC + k} dst_sel:DWORD dst_unused:UNUSED_PAD src0_sel:DWORD src1_sel:BYTE_3")
        a(f"    ds_add_rtn_u32 v{RK + k}, v{AD + k}, v{V_T}")
    a(f"""
    s_mov_b64 exec, -1
    v_cmp_lt_i32 vcc, 32, v{V_REM}
    s_cmp_eq_u64 vcc, 0
    s_cbranch_scc1 K2_P1_NOB
    s_mov_b64 exec, vcc
    ds_write_b32 v{V_APX}, v{V_T}
    s_mov_b64 exec, -1
K2_P1_NOB:
    s_waitcnt lgkmcnt(0)
    s_barrier
""")
    stamp(a, opt, 5)
    a(f"""
    ; per-node counts -> positions (lane = node): v_nend = inclusive sum, v_t = exclusive sum
    ds_read_b32 v{V_NEND}, v{V_PA}
    ds_read_b32 v{V_PB}, v{V_PA}
    ds_read_b32 v{V_APX}, v{V_APX}
    s_waitcnt lgkmcnt(0)
    v_readfirstlane_b32 s{S_MORE}, v{V_APX}
""")
    scan64(a, V_NEND)
    a(f"""
    s_nop 0
    v_readlane_b32 s{S_T}, v{V_NEND}, 63
    v_sub_u32 v{V_T}, v{V_NEND}, v{V_PB}
    v_add_u32 v{V_AP}, v{V_T}, v{V_NEND}
    v_cmp_lt_u32 s[{S_M}:{S_M + 1}], 0, v{V_PB}
""")
    for k in range(4):
        a(f"    ds_bpermute_b32 v{BS + k}, v{AD + k}, v{V_T}")
    a(f"""
    s_mul_i32 s40, s{S_V}, s{S_T}
    s_add_u32 s41, s40, s{S_T}
    s_add_u32 s40, s40, 7
    s_lshr_b32 s40, s40, 3
    s_add_u32 s41, s41, 7
    s_lshr_b32 s41, s41, 3
    v_cmp_le_u32 vcc, s40, v{V_AP}
    s_and_b64 s[{S_M}:{S_M + 1}], s[{S_M}:{S_M + 1}], vcc
    v_cmp_gt_u32 vcc, s41, v{V_AP}
    s_and_b64 s[{S_M}:{S_M + 1}], s[{S_M}:{S_M + 1}], vcc
    s_mov_b32 s{S_S}, 0
    s_mov_b32 s{S_REM}, 0
    s_cmp_eq_u64 s[{S_M}:{S_M + 1}], 0
    s_cbranch_scc1 K2_NOWORK_A
    s_ff1_i32_b64 s40, s[{S_M}:{S_M + 1}]
    s_flbit_i32_b64 s41, s[{S_M}:{S_M + 1}]
    s_sub_u32 s41, 63, s41
    v_readlane_b32 s{S_S}, v{V_T}, s40
    v_readlane_b32 s42, v{V_NEND}, s41
K2_NOWORK_A:
    s_waitcnt lgkmcnt(0)
""")
    for d in range(4):
        a(f"    s_mov_b64 exec, s[{S_EX + 2 * d}:{S_EX + 2 * d + 1}]")
        a(f"    v_add_lshl_u32 v{BS + d}, v{BS + d}, v{RK + d}, 2")
        a(f"    ds_write_b32 v{BS + d}, v{V_REC + d} offset:{L_LIST}")
    a(f"""
    s_mov_b64 exec, -1
    s_cmp_eq_u32 s{S_HASB}, 0
    s_cbranch_scc1 K2_P2_NOB
""")
    for k in range(4, 8):
        a(f"    ds_bpermute_b32 v{BS + k}, v{AD + k}, v{V_T}")
    a("    s_waitcnt lgkmcnt(0)")
    for d in range(4):
        k = 4 + d
        a(f"    v_cmp_lt_i32 vcc, {16 + d}, v{V_REM}")
        a(f"    s_mov_b64 exec, vcc")
        a(f"    v_add_lshl_u32 v{BS + k}, v{BS + k}, v{RK + k}, 2")
        a(f"    ds_write_b32 v{BS + k}, v{V_REC + k} offset:{L_LIST}")
    a(f"""
    s_mov_b64 exec, -1
K2_P2_NOB:
    s_cmp_eq_u64 s[{S_M}:{S_M + 1}], 0
    s_cbranch_scc1 K2_NOWORK_B
    s_sub_u32 s{S_REM}, s42, s{S_S}
    s_add_u32 s{S_REM}, s{S_REM}, 15
    s_lshr_b32 s{S_REM}, s{S_REM}, 4
    s_min_u32 s{S_REM}, s{S_REM}, 600
K2_NOWORK_B:
    s_lshl_b32 s40, s{S_S}, 2
    v_add_u32 v{V_RA}, s40, v{V_RA0}
    s_waitcnt lgkmcnt(0)
    s_barrier
""")
    stamp(a, opt, 6)
    if opt.get("diag"):
        a(f"    s_mov_b32 s{S_ST + 24}, s{S_REM}")
    a(f"""
    s_cmp_eq_u32 s{S_REM}, 0
    s_cbranch_scc1 K2_IDLE
""")
    ns = OPT["ns"]
    PIDX = (lambda pp: (V_Q + 4 * pp, V_Q + 4 * pp + 2)) if ns > 1 else (lambda pp: V_IDX[0])
    for pp in range(ns):
        a(f"    ds_read_u16 v{PIDX(pp)[0]}, v{V_RA} offset:{pp * 64}")
        a(f"    ds_read_u16 v{PIDX(pp)[1]}, v{V_RA} offset:{pp * 64 + 32}")
    a(f"    ds_read_u16 v{V_QVA}, v{V_RA} offset:2")
    a(f"    ds_read_u16 v{V_QVB}, v{V_RA} offset:34")
    if OPT.get("prio"):
        a("    s_setprio 3")
    if ns == 4:
        park(a)
    for pp in range(ns):
        if pp > 0:
            a(f"    s_cmp_le_u32 s{S_REM}, {pp}")
            a(f"    s_cbranch_scc1 K2_PRO_DONE")
        a(f"    s_waitcnt lgkmcnt({min(15, 2 * (ns - pp))})" if ns < 4 else ("    s_waitcnt lgkmcnt(0)" if pp == 0 else ""))
        xload(a, V_X + 16 * pp, PIDX(pp)[0], 0)
        xload(a, V_X + 16 * pp, PIDX(pp)[1], 1)
        if OPT.get("prio") and pp < 2:
            a(f"    s_setprio {max(0, 1 - pp)}")
    a(f"""
K2_PRO_DONE:
    s_waitcnt lgkmcnt(0)
""")
    qreads(a)
    a(f"""
    ds_read_u16 v{V_QVA}, v{V_RA} offset:{64 + 2}
    ds_read_u16 v{V_QVB}, v{V_RA} offset:{64 + 34}
    ds_read_u16 v{V_IDX[0][0]}, v{V_RA} offset:{ns * 64}
    ds_read_u16 v{V_IDX[0][1]}, v{V_RA} offset:{ns * 64 + 32}
    s_sub_u32 s{S_REM}, s{S_REM}, 1
    s_mov_b32 s{S_PEND}, s{S_S}
    s_mov_b32 s{S_SEL}, {OPT["ns"]}
""")
    if OPT.get("prio"):
        a(f"""
    s_mov_b32 s{S_THR}, -1
    s_setprio 0
    s_cmp_lt_u32 s{S_REM}, {PT[0]}
    s_cbranch_scc1 K2_PRIO_SET
    s_mov_b32 s{S_THR}, {PT[0] - 1}
    s_setprio 1
    s_cmp_lt_u32 s{S_REM}, {PT[1]}
    s_cbranch_scc1 K2_PRIO_SET
    s_mov_b32 s{S_THR}, {PT[1] - 1}
    s_setprio 2
    s_cmp_lt_u32 s{S_REM}, {PT[2]}
    s_cbranch_scc1 K2_PRIO_SET
    s_mov_b32 s{S_THR}, {PT[2] - 1}
    s_setprio 3
K2_PRIO_SET:
""")
    a(f"""
    s_branch K2_NEXTNODE
K2_LOOP:
""")
    NS = OPT["ns"]
    for s in range(NS):
        step(a, s)
    a("    s_branch K2_STEP0")
    for s in range(NS):
        step_ool(a, s)
    a("K2_IDLE:")
    if NS == 4:
        park(a)
    a("    s_branch K2_LOOP_END")

    T0 = V_REC
    a(f"""
K2_FLUSH:
    s_lshl_b32 s{S_T}, s{S_NODE}, 8
    s_add_u32 s{S_T}, s{S_T}, {L_AGG}
    s_and_b32 s40, s{S_NODE}, 15
    s_lshl_b32 s40, s40, 4
    s_or_b32 s{S_T}, s{S_T}, s40
    v_xor_b32 v{V_APX}, s{S_T}, v{V_FK}
    s_nop 3
""")
    for i in range(4):
        a(f"    v_permlane32_swap_b32 v{V_D0 + i}, v{V_D1 + i}")
    for i in range(4):
        a(f"    v_add_f32_dpp v{V_D0 + i}, v{V_D1 + i}, v{V_D0 + i} row_shl:8 row_mask:0xf bank_mask:0x3")
    a(f"""
    s_cmp_lg_u32 s{S_ROUND}, 0
    s_cbranch_scc1 K2_FLUSH_RMW
K2_FLUSH_PACK:
    v_cvt_pk_bf16_f32 v{T0 + 0}, v{V_D0 + 0}, v{V_D0 + 1}
    v_cvt_pk_bf16_f32 v{T0 + 1}, v{V_D0 + 2}, v{V_D0 + 3}
    s_mov_b64 exec, s[{S_VALID}:{S_VALID + 1}]
    ds_write_b64 v{V_APX}, {vr(T0, 2)}
    s_mov_b64 exec, -1
K2_NEXTNODE:
    s_mov_b32 s{S_NEND}, -1
    s_cmp_eq_u64 s[{S_M}:{S_M + 1}], 0
    s_cbranch_scc1 K2_FLUSH_RET
    s_ff1_i32_b64 s{S_NODE}, s[{S_M}:{S_M + 1}]
    s_bitset0_b64 s[{S_M}:{S_M + 1}], s{S_NODE}
    v_readlane_b32 s{S_NEND}, v{V_NEND}, s{S_NODE}
""")
    for i in range(4):
        a(f"    v_mov_b64 {vr(V_D0 + 2 * i, 2)}, 0")
    a(f"""
    s_cmp_le_u32 s{S_NEND}, s{S_PEND}
    s_cbranch_scc1 K2_FLUSH_AGAIN
K2_FLUSH_RET:
""")
    for s in range(NS):
        a(f"    s_cmp_eq_u32 s{S_SEL}, {s}")
        a(f"    s_cbranch_scc1 K2_RET{s}")
    a("    s_branch K2_LOOP")
    a("K2_FLUSH_AGAIN:")
    for s in range(NS - 1):
        a(f"    s_cmp_eq_u32 s{S_SEL}, {s}")
        a(f"    s_cbranch_scc1 K2_BND{s}")
    a(f"    s_branch K2_BND{NS - 1}")
    a(f"""
K2_FLUSH_RMW:
    ds_read_b64 {vr(T0, 2)}, v{V_APX}
    s_waitcnt lgkmcnt(0)
    v_lshlrev_b32 v{T0 + 2}, 16, v{T0}
    v_and_b32 v{T0 + 3}, 0xffff0000, v{T0}
    v_add_f32 v{V_D0 + 0}, v{V_D0 + 0}, v{T0 + 2}
    v_add_f32 v{V_D0 + 1}, v{V_D0 + 1}, v{T0 + 3}
    v_lshlrev_b32 v{T0 + 2}, 16, v{T0 + 1}
    v_and_b32 v{T0 + 3}, 0xffff0000, v{T0 + 1}
    v_add_f32 v{V_D0 + 2}, v{V_D0 + 2}, v{T0 + 2}
    v_add_f32 v{V_D0 + 3}, v{V_D0 + 3}, v{T0 + 3}
    s_branch K2_FLUSH_PACK

K2_LOOP_END:
""")
    if OPT.get("prio"):
        a("    s_setprio 0")
    a(f"""
    s_cmp_lg_u32 s{S_MORE}, 0
    s_cbranch_scc1 K2_MORE
""")
    if NS == 4:
        a(f"""
    s_cmp_lt_u32 s{S_W}, 8
    s_cbranch_scc1 K2_NOFETCH
    s_and_b32 s40, s{S_W}, 7
    s_lshl_b32 s40, s40, 12
    s_add_u32 s40, s40, {L_WV}
    v_lshlrev_b32 v{V_PA}, 4, v1
    v_add_u32 v{V_PA}, s40, v{V_PA}
""")
        for ks in range(4):
            a(f"    ds_read_b128 {vr(V_WV + 4 * ks, 4)}, v{V_PA} offset:{ks * 1024}")
    a(f"""
K2_NOFETCH:
    s_waitcnt vmcnt(0) lgkmcnt(0)
""")
    stamp(a, opt, 7)
    a(f"""
    s_barrier
""")
    stamp(a, opt, 8)
    a(f"""
    s_cmp_lt_u32 s{S_W}, 8
    s_cbranch_scc1 K2_EPI_WAIT
""")
    EB = V_Q
    ED = [V_D0, V_D1, V_REC, V_REC + 4]
    for tt in range(4):
        for ks in range(4):
            a(f"    ds_read_b128 {vr(EB + (tt * 4 + ks) * 4, 4)}, v{V_GA + ks} offset:{L_AGG + tt * 4096}")
    for tt in range(4):
        a(f"    s_waitcnt lgkmcnt({4 * (3 - tt)})")
        for ks in range(4):
            c = "0" if ks == 0 else vr(ED[tt], 4)
            a(f"    v_mfma_f32_16x16x32_bf16 {vr(ED[tt], 4)}, {vr(V_WV + 4 * ks, 4)}, {vr(EB + (tt * 4 + ks) * 4, 4)}, {c}")
    a("    s_nop 3")
    for tt in range(4):
        if tt == 3:
            a("    s_nop 3")
        a(f"    v_cvt_pk_bf16_f32 v{16 + 2 * tt}, v{ED[tt]}, v{ED[tt] + 1}")
        a(f"    v_cvt_pk_bf16_f32 v{17 + 2 * tt}, v{ED[tt] + 2}, v{ED[tt] + 3}")
        a(f"    ds_write_b64 v{V_GADDR}, {vr(16 + 2 * tt, 2)} offset:{L_XT + tt * 4096}")
    a(f"""
K2_EPI_WAIT:
    s_waitcnt lgkmcnt(0)
    s_barrier
    ds_read_b128 v[40:43], v{V_TADDR} offset:{L_XT}
    s_waitcnt lgkmcnt(0)
    buffer_store_dwordx4 v[40:43], v{V_OOFF}, s[{S_OUT}:{S_OUT + 3}], 0 offen{FL[opt.get("ost", 2)]}
""")
    stamp(a, opt, 9)
    if opt.get("diag"):
        a("    s_waitcnt vmcnt(0)")
    stamp(a, opt, 10)
    stamp(a, opt, 11, real=True)
    dump_stamps(a, opt, 13, 8, 9, NW, DIAG_OFF + 0x100000)
    a(f"""
    s_endpgm

K2_MORE:
    s_waitcnt vmcnt(0) lgkmcnt(0)
    s_barrier
    s_add_u32 s{S_ROUND}, s{S_ROUND}, 1
    v_and_b32 v39, 127, v0
    v_lshlrev_b32 v39, 2, v39
    v_mov_b32 v38, 0
    ds_write_b32 v39, v38
    v_add_u32 v{V_SEG}, 128, v{V_SEG}
    v_subrev_u32 v{V_REM}, 32, v{V_REM}
""")
    seg_loads(a, "rn")
    seg_load_b(a, "rn")
    a(f"""
    s_waitcnt lgkmcnt(0)
    s_barrier
    s_branch K2_PASS1
K2_END:
    s_endpgm
""")


HEADER = f"""; Kernarg layout for this problem (64 bytes, ptrs only, base s[0:1]):
; Launch 1 buckets the edges by (dst & 255) and transposes the weights into d_ws.
; Launch 2 owns 49 destination nodes per workgroup and produces the output rows.
; @launch kernel={K1} grid=(272,1,1) block=(256,1,1) lds=8320
; @launch kernel={MAIN} grid=(256,1,1) block=({NW * 64},1,1) lds=@LDS@
.amdgcn_target "amdgcn-amd-amdhsa--gfx950"
.text
"""


def kd(name, vgpr, sgpr):
    acc = (vgpr + 3) // 4 * 4
    return f"""
.p2align 6
.amdhsa_kernel {name}
  .amdhsa_next_free_vgpr {vgpr}
  .amdhsa_next_free_sgpr {sgpr}
  .amdhsa_accum_offset {acc}
  .amdhsa_group_segment_fixed_size 0
  .amdhsa_kernarg_size 64
  .amdhsa_user_sgpr_count 2
  .amdhsa_user_sgpr_kernarg_segment_ptr 1
  .amdhsa_system_sgpr_workgroup_id_x 1
  .amdhsa_float_denorm_mode_32 3
.end_amdhsa_kernel
"""


def generate(opt=None):
    opt = opt or {}
    OPT.clear()
    OPT.update(opt)
    OPT.setdefault("ns", 1)
    OPT.setdefault("prio", 1)
    OPT.setdefault("pf2", 5)
    opt = dict(OPT)
    PARK_N[0] = 0
    if "pt" in opt:
        v = opt["pt"]
        PT[:] = [v // 100, (v // 10) % 10, v % 10]
    a = Asm()
    a(HEADER.replace("@LDS@", str(L_END if OPT["ns"] == 4 else L_WV)))
    gen_k1(a, opt)
    gen_k2(a, opt)
    a('.section .rodata,"a"')
    sg = 96 if opt.get("diag") else 64
    a(kd(K1, 80, sg))
    a(kd(MAIN, 128, sg))
    return a.text()


if __name__ == "__main__":
    out = sys.argv[1] if len(sys.argv) > 1 else "gather_scatter__kernel_systems_refs_featgraph__graph.s"
    opt = {}
    for kv in sys.argv[2:]:
        k, _, v = kv.partition("=")
        opt[k] = int(v) if v else 1
    open(out, "w").write(generate(opt))
    print("wrote", out)
```

```python
import math
import sys

OPT = {}
FL = ["", " sc1", " nt", " sc0 sc1", " sc0 sc1 nt"]
MAIN = "gather_scatter__kernel_systems_refs_featgraph__graph_kernel"
K1 = "gs_bucket_kernel"

N_NODES = 12500
N_EDGES = 400000
CHUNK = 1564
REC_STRIDE = 6400
REC_OFF = 0
TAB_OFF = 0x190000
WF_OFF = 0x1D0000
WS_SIZE = 0x1E0000

L_CNT = 0
L_FLAG = 256
L_AGG = 1024
L_QT = 17408
L_XT = 33792
L_LIST = 50176
L_WV = 84224
L_END = 116992

NW = 16
P = 3

QSCALE = -math.log2(math.e) / math.sqrt(128.0)


def f32bits(x):
    import struct
    return struct.unpack("<I", struct.pack("<f", x))[0]


class Asm:
    def __init__(self):
        self.lines = []

    def __call__(self, text=""):
        for ln in text.strip("\n").split("\n"):
            self.lines.append(ln.rstrip())

    def text(self):
        return "\n".join(self.lines) + "\n"


def vr(a, n):
    return f"v[{a}:{a + n - 1}]"


def srd(a, dst, lo, hi, nrec, stride=0):
    a(f"    s_mov_b32 s{dst}, s{lo}")
    a(f"    s_and_b32 s{dst + 1}, s{hi}, 0xffff")
    if stride:
        a(f"    s_or_b32 s{dst + 1}, s{dst + 1}, {hex(stride << 16)}")
    a(f"    s_mov_b32 s{dst + 2}, {hex(nrec)}")
    a(f"    s_mov_b32 s{dst + 3}, 0x20000")


DIAG_OFF = 0x400000
S_ST = 60


def stamp(a, opt, i, real=False):
    if not opt.get("diag"):
        return
    op = "s_memrealtime" if real else "s_memtime"
    a(f"    {op} s[{S_ST + 2 * i}:{S_ST + 2 * i + 1}]")
    a("    s_waitcnt lgkmcnt(0)")


def dump_stamps(a, opt, n, ptr_lo, ptr_hi, waves_per_wg, base):
    if not opt.get("diag"):
        return
    a(f"    s_mov_b32 s52, s{ptr_lo}")
    a(f"    s_and_b32 s53, s{ptr_hi}, 0xffff")
    a(f"    s_mov_b32 s54, 0x1000000")
    a(f"    s_mov_b32 s55, 0x20000")
    a(f"    v_mov_b32 v2, 0")
    for i in range(n):
        a(f"    v_writelane_b32 v2, s{S_ST + 2 * i}, {i}")
    a(f"    v_lshrrev_b32 v3, 6, v0")
    a(f"    s_mul_i32 s56, s2, {waves_per_wg}")
    a(f"    v_add_u32 v3, s56, v3")
    a(f"    v_lshlrev_b32 v3, 6, v3")
    a(f"    v_and_b32 v4, 63, v0")
    a(f"    v_lshl_add_u32 v3, v4, 2, v3")
    a(f"    v_add_u32 v3, {hex(base)}, v3")
    a(f"    s_mov_b64 exec, 0xffff")
    a(f"    buffer_store_dword v2, v3, s[52:55], 0 offen")
    a(f"    s_mov_b64 exec, -1")


def scan64(a, reg):
    for ctl in ("row_shr:1", "row_shr:2", "row_shr:4", "row_shr:8"):
        a(f"    s_nop 1")
        a(f"    v_add_u32_dpp v{reg}, v{reg}, v{reg} {ctl} row_mask:0xf bank_mask:0xf bound_ctrl:1")
    a(f"    s_nop 1")
    a(f"    v_add_u32_dpp v{reg}, v{reg}, v{reg} row_bcast:15 row_mask:0xa bank_mask:0xf")
    a(f"    s_nop 1")
    a(f"    v_add_u32_dpp v{reg}, v{reg}, v{reg} row_bcast:31 row_mask:0xc bank_mask:0xf")


def k1_prefetch(a, opt, where):
    if opt.get("pfpos", 0) != where:
        return
    n = opt.get("pf", 0)
    if n:
        srd(a, 40, 34, 35, N_NODES * 256)
        a(f"""
    s_lshr_b32 s38, s2, 3
    s_mul_i32 s38, s38, {782 * 128}
    v_lshlrev_b32 v64, 7, v0
    v_add_u32 v64, s38, v64
""")
        for i in range(n):
            if i:
                a(f"    v_add_u32 v64, 0x8000, v64")
            if i == 3:
                a(f"    v_cmp_gt_u32 vcc, {782 - 768}, v0")
                a(f"    s_mov_b64 exec, vcc")
                a(f"    s_cbranch_execz K1_PF_DONE")
            a(f"    buffer_load_dword v{65 + i}, v64, s[40:43], 0 offen")
        if n > 3:
            a("K1_PF_DONE:")
            a("    s_mov_b64 exec, -1")
    if opt.get("pfm"):
        srd(a, 40, 34, 35, N_NODES * 256)
        a(f"""
    s_mul_i32 s38, s2, {98 * 128}
    v_lshlrev_b32 v64, 7, v0
    v_add_u32 v64, s38, v64
    v_mov_b32 v66, 0x7ffffff0
    v_cmp_gt_u32 vcc, 98, v0
    s_nop 1
    v_cndmask_b32 v64, v66, v64, vcc
    buffer_load_dword v65, v64, s[40:43], 0 offen
""")
    if opt.get("codepf"):
        a(f"""
    s_getpc_b64 s[44:45]
K1_PC:
    s_add_u32 s44, s44, {MAIN}-K1_PC
    s_addc_u32 s45, s45, 0
    v_and_b32 v70, 63, v0
    v_lshlrev_b32 v70, 7, v70
    v_min_u32 v70, K2_END-{MAIN}, v70
    global_load_dword v71, v70, s[44:45]
""")
    if opt.get("touch"):
        srd(a, 40, 36, 37, N_NODES * 256)
        a(f"""
    v_and_b32 v72, 1, v0
    v_lshlrev_b32 v72, 21, v72
    buffer_load_dword v73, v72, s[40:43], 0 offen
""")
        srd(a, 40, 34, 35, N_NODES * 256)
        a(f"""
    buffer_load_dword v74, v72, s[40:43], 0 offen
""")

def gen_k1(a, opt):
    a(f"""
.globl {K1}
.p2align 8
.type {K1},@function
{K1}:
    s_cmp_ge_u32 s2, 272
    s_cbranch_scc1 K1_END
    s_load_dwordx4 s[4:7], s[0:1], 8
    s_load_dwordx4 s[8:11], s[0:1], 24
    s_load_dwordx2 s[12:13], s[0:1], 56
    s_load_dwordx2 s[34:35], s[0:1], 0
    s_load_dwordx2 s[36:37], s[0:1], 40
    s_cmp_ge_u32 s2, 256
    s_cbranch_scc1 K1_WPREP
""")
    stamp(a, opt, 0, real=True)
    stamp(a, opt, 1)
    a(f"""
    v_lshlrev_b32 v1, 2, v0
    v_mov_b32 v2, 0
    ds_write_b32 v1, v2
    s_mul_i32 s14, s2, {CHUNK * 4}
    v_lshlrev_b32 v3, 4, v0
    v_add_u32 v4, s14, v3
    v_add_u32 v5, 0x1000, v4
    s_movk_i32 s15, {(CHUNK - 1024) // 4}
    s_cmp_eq_u32 s2, 255
    s_cselect_b32 s15, {(N_EDGES - 255 * CHUNK - 1024) // 4}, s15
    s_and_b32 s28, s2, 7
    s_lshl_b32 s28, s28, 5
    s_lshr_b32 s29, s2, 3
    s_add_u32 s28, s28, s29
    v_mov_b32 v6, 1
    v_cmp_gt_u32 vcc, s15, v0
    s_mov_b64 s[32:33], vcc
    s_waitcnt lgkmcnt(0)
""")
    srd(a, 16, 4, 5, N_EDGES * 4)
    srd(a, 20, 6, 7, N_EDGES * 4)
    srd(a, 24, 12, 13, WS_SIZE)
    a(f"""
    buffer_load_dwordx4 v[8:11], v4, s[20:23], 0 offen
    buffer_load_dwordx4 v[12:15], v4, s[16:19], 0 offen
    s_mov_b64 exec, s[32:33]
    s_cbranch_execz K1_A
    buffer_load_dwordx4 v[16:19], v5, s[20:23], 0 offen
    buffer_load_dwordx4 v[20:23], v5, s[16:19], 0 offen
K1_A:
    s_mov_b64 exec, -1
""")
    npf0 = 0
    if opt.get("pfpos", 0) == 0:
        npf0 = opt.get("pf", 0) + (1 if opt.get("codepf") else 0) + (2 if opt.get("touch") else 0) + (1 if opt.get("pfm") else 0)
    k1_prefetch(a, opt, 0)
    if npf0 and opt.get("pf", 0) > 3:
        npf0 -= 1
    a(f"""
    s_barrier
    s_waitcnt vmcnt({npf0})
""")
    k1_prefetch(a, opt, 1)
    stamp(a, opt, 2)

    def edges(dbase, sbase, abase, rbase):
        for e in range(4):
            a(f"    v_lshlrev_b32_sdwa v{abase + e}, 2, v{dbase + e} dst_sel:DWORD dst_unused:UNUSED_PAD src0_sel:DWORD src1_sel:BYTE_0")
            a(f"    ds_add_rtn_u32 v{rbase + e}, v{abase + e}, v6")
        for e in range(4):
            a(f"    v_lshrrev_b32 v7, 8, v{dbase + e}")
            a(f"    v_lshl_or_b32 v{sbase + e}, v7, 24, v{sbase + e}")
            a(f"    v_and_b32 v7, 7, v7")
            a(f"    v_lshl_or_b32 v{sbase + e}, v7, 20, v{sbase + e}")

    edges(8, 12, 24, 32)
    a("""
    s_mov_b64 exec, s[32:33]
    s_cbranch_execz K1_B
""")
    edges(16, 20, 28, 36)
    a("""
K1_B:
    s_mov_b64 exec, -1
    s_waitcnt lgkmcnt(0)
    s_barrier
""")
    stamp(a, opt, 3)
    a("""
    v_and_b32 v48, 63, v0
    v_lshlrev_b32 v48, 4, v48
    ds_read_b128 v[52:55], v48
    ds_read_b32 v56, v1
    s_waitcnt lgkmcnt(0)
    v_add_u32 v49, v52, v53
    v_add_u32 v50, v49, v54
    v_add_u32 v51, v50, v55
    v_mov_b32 v57, v51
""")
    scan64(a, 57)
    a(f"""
    v_sub_u32 v58, v57, v51
    v_add_u32 v59, v58, v52
    v_add_u32 v60, v58, v49
    v_add_u32 v61, v58, v50
    ds_write_b128 v48, v[58:61] offset:1024
""")
    for e in range(4):
        a(f"    ds_read_b32 v{40 + e}, v{24 + e} offset:1024")
    a("    ds_read_b32 v62, v1 offset:1024")
    a("""
    s_mov_b64 exec, s[32:33]
    s_cbranch_execz K1_C
""")
    for e in range(4):
        a(f"    ds_read_b32 v{44 + e}, v{28 + e} offset:1024")
    a("    s_waitcnt lgkmcnt(0)")
    for e in range(4):
        a(f"    v_add_lshl_u32 v{44 + e}, v{44 + e}, v{36 + e}, 2")
        a(f"    ds_write_b32 v{44 + e}, v{20 + e} offset:2048")
    a("""
K1_C:
    s_mov_b64 exec, -1
    s_waitcnt lgkmcnt(0)
""")
    for e in range(4):
        a(f"    v_add_lshl_u32 v{40 + e}, v{40 + e}, v{32 + e}, 2")
        a(f"    ds_write_b32 v{40 + e}, v{12 + e} offset:2048")
    a(f"""
    v_lshl_or_b32 v62, v56, 16, v62
    v_lshlrev_b32 v63, 10, v0
    s_lshl_b32 s29, s28, 2
    s_add_u32 s29, s29, {hex(TAB_OFF)}
    buffer_store_dword v62, v63, s[24:27], s29 offen
    s_mul_i32 s30, s28, {REC_STRIDE}
    v_add_u32 v5, 0x1000, v3
    s_waitcnt lgkmcnt(0)
    s_barrier
    ds_read_b128 v[8:11], v3 offset:2048
    s_mov_b64 exec, s[32:33]
    s_cbranch_execz K1_D
    ds_read_b128 v[12:15], v3 offset:6144
    s_waitcnt lgkmcnt(0)
    buffer_store_dwordx4 v[12:15], v5, s[24:27], s30 offen{FL[opt.get("rst", 0)]}
K1_D:
    s_mov_b64 exec, -1
    s_waitcnt lgkmcnt(0)
    buffer_store_dwordx4 v[8:11], v3, s[24:27], s30 offen{FL[opt.get("rst", 0)]}
""")
    stamp(a, opt, 4)
    if opt.get("diag"):
        a("    s_waitcnt vmcnt(0)")
    stamp(a, opt, 5)
    stamp(a, opt, 6, real=True)
    dump_stamps(a, opt, 7, 12, 13, 4, DIAG_OFF)
    a(f"""
    s_endpgm

K1_WPREP:
    s_sub_u32 s14, s2, 256
    s_lshr_b32 s15, s14, 3
    s_and_b32 s28, s14, 7
    v_and_b32 v1, 15, v0
    v_bfe_u32 v2, v0, 4, 2
    v_lshrrev_b32 v3, 6, v0
    v_lshlrev_b32 v3, 13, v3
    v_lshl_add_u32 v3, v2, 11, v3
    v_lshl_add_u32 v3, v1, 1, v3
    s_lshl_b32 s29, s28, 5
    v_add_u32 v3, s29, v3
    v_lshlrev_b32 v4, 4, v0
    s_lshl_b32 s30, s14, 12
    s_add_u32 s30, s30, {hex(WF_OFF)}
    s_cmp_eq_u32 s15, 0
    s_waitcnt lgkmcnt(0)
    s_cselect_b32 s16, s8, s10
    s_cselect_b32 s17, s9, s11
    s_and_b32 s17, s17, 0xffff
    s_mov_b32 s18, 0x8000
    s_mov_b32 s19, 0x20000
""")
    srd(a, 24, 12, 13, WS_SIZE)
    for j in range(8):
        a(f"    buffer_load_ushort v{8 + j}, v3, s[16:19], 0 offen offset:{j * 256}")
    a("    s_waitcnt vmcnt(0)")
    for j in range(4):
        a(f"    v_lshl_or_b32 v{16 + j}, v{9 + 2 * j}, 16, v{8 + 2 * j}")
    a(f"""
    buffer_store_dwordx4 v[16:19], v4, s[24:27], s30 offen
K1_END:
    s_endpgm
""")


def gen_k1_wide(a, opt):
    a(f"""
.globl {K1}
.p2align 8
.type {K1},@function
{K1}:
    s_cmp_ge_u32 s2, 272
    s_cbranch_scc1 K1_END
    s_load_dwordx4 s[4:7], s[0:1], 8
    s_load_dwordx2 s[12:13], s[0:1], 56
    s_load_dwordx4 s[8:11], s[0:1], 24
    s_cmp_ge_u32 s2, 256
    s_cbranch_scc1 K1_WPREP
""")
    stamp(a, opt, 0, real=True)
    stamp(a, opt, 1)
    a(f"""
    s_mul_i32 s14, s2, {CHUNK * 4}
    v_lshlrev_b32 v3, 4, v0
    v_add_u32 v4, s14, v3
    s_movk_i32 s15, {CHUNK // 4}
    s_cmp_eq_u32 s2, 255
    s_cselect_b32 s15, {(N_EDGES - 255 * CHUNK) // 4}, s15
    v_cmp_gt_u32 vcc, s15, v0
    s_mov_b64 s[32:33], vcc
    v_mov_b32 v7, 0x7ffffff0
    v_cndmask_b32 v4, v7, v4, vcc
    s_waitcnt lgkmcnt(0)
""")
    srd(a, 20, 6, 7, N_EDGES * 4)
    a("    buffer_load_dwordx4 v[8:11], v4, s[20:23], 0 offen")
    srd(a, 16, 4, 5, N_EDGES * 4)
    a("    buffer_load_dwordx4 v[12:15], v4, s[16:19], 0 offen")
    srd(a, 24, 12, 13, WS_SIZE)
    a(f"""
    v_and_b32 v1, 255, v0
    v_lshlrev_b32 v1, 2, v1
    v_mov_b32 v2, 0
    ds_write_b32 v1, v2
    s_and_b32 s28, s2, 7
    s_lshl_b32 s28, s28, 5
    s_lshr_b32 s29, s2, 3
    s_add_u32 s28, s28, s29
    v_mov_b32 v6, 1
    v_and_b32 v48, 63, v0
    v_lshlrev_b32 v48, 4, v48
    v_lshlrev_b32 v63, 10, v0
    s_lshl_b32 s29, s28, 2
    s_add_u32 s29, s29, {hex(TAB_OFF)}
    s_mul_i32 s30, s28, {REC_STRIDE}
    s_waitcnt lgkmcnt(0)
    s_barrier
    s_waitcnt vmcnt(0)
""")
    stamp(a, opt, 2)
    a("    s_mov_b64 exec, s[32:33]")
    for e in range(4):
        a(f"    v_lshlrev_b32_sdwa v{24 + e}, 2, v{8 + e} dst_sel:DWORD dst_unused:UNUSED_PAD src0_sel:DWORD src1_sel:BYTE_0")
        a(f"    ds_add_rtn_u32 v{32 + e}, v{24 + e}, v6")
    for e in range(4):
        a(f"    v_lshrrev_b32 v7, 8, v{8 + e}")
        a(f"    v_lshl_or_b32 v{12 + e}, v7, 24, v{12 + e}")
        a(f"    v_and_b32 v7, 7, v7")
        a(f"    v_lshl_or_b32 v{12 + e}, v7, 20, v{12 + e}")
    a("""
    s_mov_b64 exec, -1
    s_waitcnt lgkmcnt(0)
    s_barrier
""")
    stamp(a, opt, 3)
    a("""
    ds_read_b128 v[52:55], v48
    ds_read_b32 v56, v1
    s_waitcnt lgkmcnt(1)
    v_add_u32 v49, v52, v53
    v_add_u32 v50, v49, v54
    v_add_u32 v57, v50, v55
    v_add_u32 v51, v50, v55
""")
    scan64(a, 57)
    a(f"""
    v_sub_u32 v58, v57, v51
    v_add_u32 v59, v58, v52
    v_add_u32 v60, v58, v49
    v_add_u32 v61, v58, v50
    ds_write_b128 v48, v[58:61] offset:1024
""")
    for e in range(4):
        a(f"    ds_read_b32 v{40 + e}, v{24 + e} offset:1024")
    a(f"""
    ds_read_b32 v62, v1 offset:1024
    s_mov_b64 exec, s[32:33]
    s_waitcnt lgkmcnt(1)
""")
    for e in range(4):
        a(f"    v_add_lshl_u32 v{40 + e}, v{40 + e}, v{32 + e}, 2")
        a(f"    ds_write_b32 v{40 + e}, v{12 + e} offset:2048")
    a(f"""
    s_mov_b64 exec, -1
    v_cmp_gt_u32 vcc, 256, v0
    s_waitcnt lgkmcnt(4)
    v_lshl_or_b32 v62, v56, 16, v62
    s_mov_b64 exec, vcc
    s_cbranch_execz K1_NOTAB
    buffer_store_dword v62, v63, s[24:27], s29 offen
K1_NOTAB:
    s_mov_b64 exec, -1
    s_waitcnt lgkmcnt(0)
    s_barrier
    ds_read_b128 v[8:11], v3 offset:2048
    s_mov_b64 exec, s[32:33]
    s_cbranch_execz K1_D
    s_waitcnt lgkmcnt(0)
    buffer_store_dwordx4 v[8:11], v3, s[24:27], s30 offen{FL[opt.get("rst", 0)]}
K1_D:
    s_mov_b64 exec, -1
""")
    stamp(a, opt, 4)
    if opt.get("diag"):
        a("    s_waitcnt vmcnt(0)")
    stamp(a, opt, 5)
    stamp(a, opt, 6, real=True)
    dump_stamps(a, opt, 7, 12, 13, 7, DIAG_OFF)
    a(f"""
    s_endpgm

K1_WPREP:
    v_cmp_gt_u32 vcc, 256, v0
    s_mov_b64 exec, vcc
    s_cbranch_execz K1_END
    s_sub_u32 s14, s2, 256
    s_lshr_b32 s15, s14, 3
    s_and_b32 s28, s14, 7
    v_and_b32 v1, 15, v0
    v_bfe_u32 v2, v0, 4, 2
    v_lshrrev_b32 v3, 6, v0
    v_lshlrev_b32 v3, 13, v3
    v_lshl_add_u32 v3, v2, 11, v3
    v_lshl_add_u32 v3, v1, 1, v3
    s_lshl_b32 s29, s28, 5
    v_add_u32 v3, s29, v3
    v_lshlrev_b32 v4, 4, v0
    s_lshl_b32 s30, s14, 12
    s_add_u32 s30, s30, {hex(WF_OFF)}
    s_cmp_eq_u32 s15, 0
    s_waitcnt lgkmcnt(0)
    s_cselect_b32 s16, s8, s10
    s_cselect_b32 s17, s9, s11
    s_and_b32 s17, s17, 0xffff
    s_mov_b32 s18, 0x8000
    s_mov_b32 s19, 0x20000
""")
    srd(a, 24, 12, 13, WS_SIZE)
    for j in range(8):
        a(f"    buffer_load_ushort v{8 + j}, v3, s[16:19], 0 offen offset:{j * 256}")
    a("    s_waitcnt vmcnt(0)")
    for j in range(4):
        a(f"    v_lshl_or_b32 v{16 + j}, v{9 + 2 * j}, 16, v{8 + 2 * j}")
    a(f"""
    buffer_store_dwordx4 v[16:19], v4, s[24:27], s30 offen
K1_END:
    s_endpgm
""")


V_IDX = [(2, 4), (116, 118)]
V_COFF = 3
V_SIDX, V_P, V_RA, V_FK, V_NEND = 6, 7, 8, 9, 10
V_QVA, V_QVB = 11, 12
V_SEG = 13
V_PA, V_PB, V_T, V_AP, V_APX = 14, 15, 16, 17, 18
V_REM = 19
V_A = 20
V_D0, V_D1 = 24, 28
V_Q = 32
V_X = 48
V_WV = 96
V_REC = 112
V_GA = 120
V_RA0, V_OOFF, V_GADDR, V_TADDR = 124, 125, 126, 127
V_PM = 88
NS = 4
S_KEY, S_W, S_ROUND = 3, 10, 11
S_XI, S_XR, S_OUT, S_WS = 12, 16, 20, 24
S_S, S_PEND, S_NEND, S_REM = 28, 29, 30, 31
S_M, S_NODE, S_SEL, S_SPLIT, S_T = 32, 34, 35, 36, 37
S_VALID = 38
S_HASB = 43
S_V, S_MORE, S_THR = 47, 46, 48
S_EX = 52
S_E = 42
PT = [2, 4, 6]


def seg_loads(a, tag):
    a(f"""
    buffer_load_dwordx4 {vr(V_REC, 4)}, v{V_SEG}, s[{S_WS}:{S_WS + 3}], 0 offen
""")


def seg_load_b(a, tag):
    a(f"""
    v_cmp_lt_i32 vcc, 16, v{V_REM}
    s_mov_b32 s{S_HASB}, 0
    s_cmp_eq_u64 vcc, 0
    s_cbranch_scc1 K2_NOB_{tag}
    s_mov_b32 s{S_HASB}, 1
    buffer_load_dwordx4 {vr(V_REC + 4, 4)}, v{V_SEG}, s[{S_WS}:{S_WS + 3}], 0 offen offset:64
K2_NOB_{tag}:
""")


def a_setup(a, src):
    a(f"    v_mov_b32_dpp v{V_A + 0}, v{src} quad_perm:[0,1,2,3] row_mask:0xf bank_mask:0x5")
    a(f"    v_mov_b32_dpp v{V_A + 1}, v{src} row_shr:4 row_mask:0xf bank_mask:0xa")
    a(f"    v_mov_b32_dpp v{V_A + 2}, v{src} row_shl:4 row_mask:0xf bank_mask:0x5")
    a(f"    v_mov_b32_dpp v{V_A + 3}, v{src} quad_perm:[0,1,2,3] row_mask:0xf bank_mask:0xa")


def smf(a, X):
    a(f"    v_smfmac_f32_16x16x64_bf16 {vr(V_D0, 4)}, {vr(V_A, 4)}, {vr(X, 8)}, v{V_SIDX}")
    a(f"    v_smfmac_f32_16x16x64_bf16 {vr(V_D1, 4)}, {vr(V_A, 4)}, {vr(X + 8, 8)}, v{V_SIDX}")


def xload(a, X, idx, half):
    if OPT.get("noload"):
        return
    s = f"s[{S_XI}:{S_XI + 3}]"
    fl = ["", " sc0", " sc1", " sc0 sc1"][OPT.get("xfl", 0)]
    a(f"    buffer_load_dwordx4 {vr(X + 4 * half, 4)}, {vr(idx, 2)}, {s}, 0 idxen offen{fl}")
    a(f"    buffer_load_dwordx4 {vr(X + 8 + 4 * half, 4)}, {vr(idx, 2)}, {s}, 0 idxen offen offset:128{fl}")


def qreads(a):
    a(f"    v_xor_b32 v{V_QVA}, v{V_QVA}, v{V_COFF}")
    a(f"    v_xor_b32 v{V_QVB}, v{V_QVB}, v{V_COFF}")
    a(f"    ds_read_b128 {vr(V_Q + 0, 4)}, v{V_QVA} offset:{L_QT}")
    a(f"    ds_read_b128 {vr(V_Q + 4, 4)}, v{V_QVA} offset:{L_QT + 128}")
    a(f"    ds_read_b128 {vr(V_Q + 8, 4)}, v{V_QVB} offset:{L_QT}")
    a(f"    ds_read_b128 {vr(V_Q + 12, 4)}, v{V_QVB} offset:{L_QT + 128}")


def dots(a, X, lo, hi):
    for i in range(lo, hi):
        if OPT.get("nodots"):
            continue
        xa = X + (i if i < 4 else 8 + i - 4)
        xb = X + 4 + (i if i < 4 else 8 + i - 4)
        ca = "0" if i == 0 else f"v{V_PA}"
        cb = "0" if i == 0 else f"v{V_PB}"
        a(f"    v_dot2_f32_bf16 v{V_PA}, v{xa}, v{V_Q + i}, {ca}")
        a(f"    v_dot2_f32_bf16 v{V_PB}, v{xb}, v{V_Q + 8 + i}, {cb}")


def tail_patch(a, npairs_expr_sgpr):
    ia, ib = V_IDX[0]
    a(f"""
    v_lshrrev_b32 v{V_APX}, 3, v1
    s_sub_u32 s41, s40, 8
    s_cselect_b32 s41, 0, s41
    v_cmp_gt_u32 vcc, s40, v{V_APX}
    v_cmp_gt_u32 s[{S_EX}:{S_EX + 1}], s41, v{V_APX}
    s_nop 1
    v_cndmask_b32 v{ia}, v{V_PM}, v{ia}, vcc
    v_cndmask_b32_e64 v{ib}, v{V_PM}, v{ib}, s[{S_EX}:{S_EX + 1}]
""")


def step_early(a, s):
    X = V_X + 16 * s
    XN = V_X + 16 * (1 - s)
    ia, ib = V_IDX[0]
    pos = OPT["early"]
    a(f"""
K2_STEP{s}:
    s_waitcnt vmcnt(0) lgkmcnt(0)
""")

    def loads(tag):
        if OPT.get("tp"):
            a(f"""
    s_cmp_le_u32 s{S_REM}, 1
    s_cbranch_scc1 K2_LAST{s}
K2_LASTB{s}:
""")
        else:
            a(f"""
    s_cmp_eq_u32 s{S_REM}, 0
    s_cbranch_scc1 K2_SKIP{tag}{s}
""")
        xload(a, XN, ia, 0)
        xload(a, XN, ib, 1)
        a(f"""
    ds_read_u16 v{ia}, v{V_RA} offset:{(s + 2) * 64}
    ds_read_u16 v{ib}, v{V_RA} offset:{(s + 2) * 64 + 32}
K2_SKIP{tag}{s}:
""")

    if pos == 1:
        loads("A")
    dots(a, X, 0, 4)
    if pos == 2:
        loads("A")
    dots(a, X, 4, 8)
    if pos == 3:
        loads("A")
    a(f"""
    v_xor_b32 v{V_QVA}, v{V_QVA}, v{V_COFF}
    v_xor_b32 v{V_QVB}, v{V_QVB}, v{V_COFF}
    s_add_u32 s{S_PEND}, s{S_PEND}, 16
    v_permlane32_swap_b32 v{V_PA}, v{V_PB}
    ds_read_b128 {vr(V_Q + 0, 4)}, v{V_QVA} offset:{L_QT}
    ds_read_b128 {vr(V_Q + 4, 4)}, v{V_QVA} offset:{L_QT + 128}
    v_permlane16_swap_b32 v{V_PA}, v{V_PB}
    ds_read_b128 {vr(V_Q + 8, 4)}, v{V_QVB} offset:{L_QT}
    ds_read_b128 {vr(V_Q + 12, 4)}, v{V_QVB} offset:{L_QT + 128}
    v_add_f32_dpp v{V_T}, v{V_PA}, v{V_PA} row_shl:4 row_mask:0xf bank_mask:0x5
    v_add_f32_dpp v{V_T}, v{V_PB}, v{V_PB} row_shr:4 row_mask:0xf bank_mask:0xa
    ds_read_u16 v{V_QVA}, v{V_RA} offset:{(s + 2) * 64 + 2}
    ds_read_u16 v{V_QVB}, v{V_RA} offset:{(s + 2) * 64 + 34}
    v_add_f32_dpp v{V_T}, v{V_T}, v{V_T} quad_perm:[1,0,3,2] row_mask:0xf bank_mask:0xf
    s_nop 1
    v_add_f32_dpp v{V_T}, v{V_T}, v{V_T} quad_perm:[2,3,0,1] row_mask:0xf bank_mask:0xf
    v_exp_f32 v{V_T}, v{V_T}
    s_nop 0
    v_add_f32 v{V_T}, 1.0, v{V_T}
    v_rcp_f32 v{V_T}, v{V_T}
    s_cmp_le_u32 s{S_NEND}, s{S_PEND}
    v_cvt_pk_bf16_f32 v{V_AP}, v{V_T}, 0
    {"s_nop 0" if OPT.get("nobnd") else f"s_cbranch_scc1 K2_BND{s}"}
    s_nop 0
K2_RET{s}:
""")
    if not OPT.get("nopv"):
        a_setup(a, V_AP)
        a("    s_nop 1")
        smf(a, X)
    if pos == 4:
        loads("A")
    if s == 1:
        a(f"    v_add_u32 v{V_RA}, 128, v{V_RA}")
    a(f"""
    s_sub_u32 s{S_REM}, s{S_REM}, 1
    s_cbranch_scc1 K2_LOOP_END
""")
    if OPT.get("prio"):
        a(f"""
    s_cmp_eq_u32 s{S_REM}, s{S_THR}
    s_cbranch_scc1 K2_PRIO{s}
K2_PRIOB{s}:
""")


def step(a, s):
    if OPT.get("early"):
        return step_early(a, s)
    ns = OPT["ns"]
    X = V_X + 16 * s
    ia, ib = V_IDX[0]
    a(f"""
K2_STEP{s}:
    s_cmp_lt_u32 s{S_REM}, {ns - 1}
    s_cbranch_scc1 K2_TAIL{s}
    s_waitcnt vmcnt({4 * (ns - 1)}) lgkmcnt(2)
K2_BACK{s}:
""")
    dots(a, X, 0, 8)
    if OPT.get("fill"):
        a(f"""
    v_xor_b32 v{V_QVA}, v{V_QVA}, v{V_COFF}
    v_xor_b32 v{V_QVB}, v{V_QVB}, v{V_COFF}
    s_add_u32 s{S_PEND}, s{S_PEND}, 16
    v_permlane32_swap_b32 v{V_PA}, v{V_PB}
    ds_read_b128 {vr(V_Q + 0, 4)}, v{V_QVA} offset:{L_QT}
    ds_read_b128 {vr(V_Q + 4, 4)}, v{V_QVA} offset:{L_QT + 128}
    v_permlane16_swap_b32 v{V_PA}, v{V_PB}
    ds_read_b128 {vr(V_Q + 8, 4)}, v{V_QVB} offset:{L_QT}
    ds_read_b128 {vr(V_Q + 12, 4)}, v{V_QVB} offset:{L_QT + 128}
    v_add_f32_dpp v{V_T}, v{V_PA}, v{V_PA} row_shl:4 row_mask:0xf bank_mask:0x5
    v_add_f32_dpp v{V_T}, v{V_PB}, v{V_PB} row_shr:4 row_mask:0xf bank_mask:0xa
    ds_read_u16 v{V_QVA}, v{V_RA} offset:{(s + 2) * 64 + 2}
    ds_read_u16 v{V_QVB}, v{V_RA} offset:{(s + 2) * 64 + 34}
    v_add_f32_dpp v{V_T}, v{V_T}, v{V_T} quad_perm:[1,0,3,2] row_mask:0xf bank_mask:0xf
    s_nop 1
    v_add_f32_dpp v{V_T}, v{V_T}, v{V_T} quad_perm:[2,3,0,1] row_mask:0xf bank_mask:0xf
    v_exp_f32 v{V_T}, v{V_T}
    s_nop 0
    v_add_f32 v{V_T}, 1.0, v{V_T}""")
    else:
        qreads(a)
        a(f"""
    ds_read_u16 v{V_QVA}, v{V_RA} offset:{(s + 2) * 64 + 2}
    ds_read_u16 v{V_QVB}, v{V_RA} offset:{(s + 2) * 64 + 34}
    v_permlane32_swap_b32 v{V_PA}, v{V_PB}
    s_add_u32 s{S_PEND}, s{S_PEND}, 16
    s_nop 0
    v_permlane16_swap_b32 v{V_PA}, v{V_PB}
    s_nop 1
    v_add_f32_dpp v{V_T}, v{V_PA}, v{V_PA} row_shl:4 row_mask:0xf bank_mask:0x5
    v_add_f32_dpp v{V_T}, v{V_PB}, v{V_PB} row_shr:4 row_mask:0xf bank_mask:0xa
    s_nop 1
    v_add_f32_dpp v{V_T}, v{V_T}, v{V_T} quad_perm:[1,0,3,2] row_mask:0xf bank_mask:0xf
    s_nop 1
    v_add_f32_dpp v{V_T}, v{V_T}, v{V_T} quad_perm:[2,3,0,1] row_mask:0xf bank_mask:0xf
    v_exp_f32 v{V_T}, v{V_T}
    s_nop 0
    v_add_f32 v{V_T}, 1.0, v{V_T}""")
    a(f"""
    v_rcp_f32 v{V_T}, v{V_T}
    s_cmp_le_u32 s{S_NEND}, s{S_PEND}
    v_cvt_pk_bf16_f32 v{V_AP}, v{V_T}, 0
    {"s_nop 0" if OPT.get("nobnd") else f"s_cbranch_scc1 K2_BND{s}"}
    s_nop 0
K2_RET{s}:
""")
    if not OPT.get("nopv"):
        a_setup(a, V_AP)
        a("    s_nop 1")
        smf(a, X)
    a(f"""
    s_cmp_lt_u32 s{S_REM}, {ns}
    s_cbranch_scc1 K2_SKIP{s}
    s_waitcnt lgkmcnt(6)
""")
    xload(a, X, ia, 0)
    xload(a, X, ib, 1)
    a(f"""
    ds_read_u16 v{ia}, v{V_RA} offset:{(s + ns + 1) * 64}
    ds_read_u16 v{ib}, v{V_RA} offset:{(s + ns + 1) * 64 + 32}
K2_SKIP{s}:
""")
    if s == ns - 1:
        a(f"    v_add_u32 v{V_RA}, {ns * 64}, v{V_RA}")
    a(f"""
    s_sub_u32 s{S_REM}, s{S_REM}, 1
    s_cbranch_scc1 K2_LOOP_END
""")
    if OPT.get("prio"):
        a(f"""
    s_cmp_eq_u32 s{S_REM}, s{S_THR}
    s_cbranch_scc1 K2_PRIO{s}
K2_PRIOB{s}:
""")


def step_ool(a, s):
    X = V_X + 16 * s
    if not OPT.get("early"):
        a(f"K2_TAIL{s}:")
        for r in range(OPT["ns"] - 2, 0, -1):
            a(f"""
    s_cmp_eq_u32 s{S_REM}, {r}
    s_cbranch_scc0 K2_TAIL{s}_{r}
    s_waitcnt vmcnt({4 * r}) lgkmcnt(0)
    s_branch K2_BACK{s}
K2_TAIL{s}_{r}:
""")
        a(f"""
    s_waitcnt vmcnt(0) lgkmcnt(0)
    s_branch K2_BACK{s}
""")
    a(f"""
K2_BND{s}:
    s_sub_u32 s{S_SPLIT}, s{S_NEND}, s{S_PEND}
    s_add_u32 s{S_SPLIT}, s{S_SPLIT}, 16
    v_cmp_gt_u32 vcc, s{S_SPLIT}, v{V_P}
    s_mov_b32 s{S_SEL}, {s}
    s_nop 0
    v_cndmask_b32 v{V_APX}, 0, v{V_AP}, vcc
    v_cndmask_b32_e64 v{V_AP}, v{V_AP}, 0, vcc
    s_nop 1
""")
    a_setup(a, V_APX)
    a("    s_nop 1")
    smf(a, X)
    a("    s_branch K2_FLUSH")
    if OPT.get("tp") and OPT.get("early"):
        a(f"""
K2_LAST{s}:
    s_cmp_eq_u32 s{S_REM}, 0
    s_cbranch_scc1 K2_SKIPA{s}
    s_sub_u32 s40, s{S_E}, s{S_PEND}
    s_sub_u32 s40, s40, {16 if OPT["early"] < 3 or True else 0}
""")
        tail_patch(a, None)
        a(f"    s_branch K2_LASTB{s}")
    if OPT.get("prio"):
        a(f"""
K2_PRIO{s}:
    s_cmp_eq_u32 s{S_THR}, {PT[2] - 1}
    s_cbranch_scc0 K2_PRIO{s}_B
    s_setprio 2
    s_mov_b32 s{S_THR}, {PT[1] - 1}
    s_branch K2_PRIOB{s}
K2_PRIO{s}_B:
    s_cmp_eq_u32 s{S_THR}, {PT[1] - 1}
    s_cbranch_scc0 K2_PRIO{s}_C
    s_setprio 1
    s_mov_b32 s{S_THR}, {PT[0] - 1}
    s_branch K2_PRIOB{s}
K2_PRIO{s}_C:
    s_setprio 0
    s_mov_b32 s{S_THR}, -1
    s_branch K2_PRIOB{s}
""")


PARK_N = [0]


def park(a):
    n = PARK_N[0]
    PARK_N[0] += 1
    a(f"""
    s_cmp_lt_u32 s{S_W}, 8
    s_cbranch_scc1 K2_NOPARK{n}
    s_cmp_lg_u32 s{S_ROUND}, 0
    s_cbranch_scc1 K2_NOPARK{n}
    s_and_b32 s40, s{S_W}, 7
    s_lshl_b32 s40, s40, 12
    s_add_u32 s40, s40, {L_WV}
    v_lshlrev_b32 v{V_PA}, 4, v1
    v_add_u32 v{V_PA}, s40, v{V_PA}
""")
    for ks in range(4):
        a(f"    ds_write_b128 v{V_PA}, {vr(V_WV + 4 * ks, 4)} offset:{ks * 1024}")
    a(f"K2_NOPARK{n}:")


def gen_k2(a, opt):
    ws = f"s[{S_WS}:{S_WS + 3}]"
    a(f"""
.globl {MAIN}
.p2align 8
.type {MAIN},@function
{MAIN}:
    s_cmp_ge_u32 s2, 256
    s_cbranch_scc1 K2_END
    s_load_dwordx2 s[8:9], s[0:1], 56
    s_load_dwordx2 s[4:5], s[0:1], 0
    s_load_dwordx2 s[6:7], s[0:1], 40
""")
    stamp(a, opt, 0, real=True)
    stamp(a, opt, 1)
    a(f"""
    v_lshrrev_b32 v1, 6, v0
    s_and_b32 s{S_KEY}, s2, 7
    s_lshl_b32 s{S_KEY}, s{S_KEY}, 5
    v_readfirstlane_b32 s{S_W}, v1
    s_lshr_b32 s40, s2, 3
    s_add_u32 s{S_KEY}, s{S_KEY}, s40
    v_and_b32 v32, 0x3fc, v0
    s_lshl_b32 s42, s{S_KEY}, 10
    s_add_u32 s42, s42, {hex(TAB_OFF)}
    s_lshl_b32 s41, s{S_KEY}, 8
    v_lshrrev_b32 v33, 4, v0
    v_and_b32 v34, 15, v0
    v_lshlrev_b32 v35, 16, v33
    v_lshl_or_b32 v35, v34, 4, v35
    v_add_u32 v{V_OOFF}, s41, v35
    s_waitcnt lgkmcnt(0)
""")
    srd(a, S_WS, 8, 9, WS_SIZE)
    a(f"    buffer_load_dword v37, v32, {ws}, s42 offen")
    srd(a, S_XR, 4, 5, N_NODES * 256)
    a(f"""
    buffer_load_dwordx4 v[40:43], v{V_OOFF}, s[{S_XR}:{S_XR + 3}], 0 offen
""")
    if opt.get("spf"):
        nl = opt["spf"]
        a(f"""
    s_cmp_lg_u32 s{S_W}, 15
    s_cbranch_scc1 K2_NOSPF
    s_and_b32 s40, s2, 7
    s_mul_i32 s40, s40, 782
    s_add_u32 s40, s40, {391 + 6400 - 64 * nl}
    s_and_b32 s40, s40, 0xffffff80
    s_max_u32 s40, s40, 6400
    s_sub_u32 s40, s40, 6400
    s_lshr_b32 s46, s2, 3
    s_mul_i32 s46, s46, {8 * REC_STRIDE}
    s_add_u32 s40, s40, s46
    v_and_b32 v38, 63, v0
    v_lshrrev_b32 v39, 3, v38
    v_mul_u32_u24 v39, {REC_STRIDE}, v39
    v_and_b32 v38, 7, v38
    v_lshl_add_u32 v39, v38, 7, v39
    buffer_load_dword v93, v39, {ws}, s40 offen
""")
        if nl == 16:
            a(f"    buffer_load_dword v92, v39, {ws}, s40 offen offset:1024")
        a("K2_NOSPF:")
    a(f"""
    v_and_b32 v1, 63, v0
    v_lshlrev_b32 v36, 4, v1
    s_lshl_b32 s45, s{S_W}, 12
    s_add_u32 s45, s45, {hex(WF_OFF)}
    s_cmp_ge_u32 s{S_W}, 8
    s_cbranch_scc1 K2_NOWQ
""")
    for ks in range(4):
        a(f"    buffer_load_dwordx4 {vr(V_X + 4 * ks, 4)}, v36, {ws}, s45 offen offset:{ks * 1024}")
    a(f"""
K2_NOWQ:
    v_lshrrev_b32 v38, 2, v0
    v_mul_u32_u24 v{V_SEG}, {REC_STRIDE}, v38
    v_and_b32 v44, 3, v0
    v_lshl_add_u32 v{V_SEG}, v44, 4, v{V_SEG}
    v_lshlrev_b32 v{V_REM}, 2, v44
    v_mov_b64 v[44:45], 0
    v_mov_b64 v[46:47], 0
    v_lshlrev_b32 v38, 4, v0
    ds_write_b128 v38, v[44:47] offset:{L_AGG}
    v_and_b32 v39, 127, v0
    v_lshlrev_b32 v39, 2, v39
    ds_write_b32 v39, v44
    v_and_b32 v38, 15, v33
    v_xor_b32 v38, v34, v38
    v_lshlrev_b32 v38, 4, v38
    v_lshl_or_b32 v{V_TADDR}, v33, 8, v38
    s_and_b32 s44, s{S_W}, 7
    v_and_b32 v32, 15, v1
    v_lshrrev_b32 v33, 4, v1
    s_lshl_b32 s49, s44, 1
    v_lshrrev_b32 v38, 1, v33
    v_add_u32 v38, s49, v38
    v_and_b32 v39, 1, v33
    v_lshlrev_b32 v39, 3, v39
    v_lshl_or_b32 v39, v32, 8, v39
    s_cmp_lt_u32 s{S_W}, 8
    s_cselect_b32 s49, 7, 15
    v_and_b32 v34, s49, v32
    v_xor_b32 v38, v38, v34
    v_lshl_or_b32 v{V_GADDR}, v38, 4, v39
    v_xor_b32 v38, v33, v32
    v_lshlrev_b32 v38, 4, v38
    v_lshl_or_b32 v{V_GA}, v32, 8, v38
    v_xor_b32 v{V_GA + 1}, 64, v{V_GA}
    v_xor_b32 v{V_GA + 2}, 0x80, v{V_GA}
    v_xor_b32 v{V_GA + 3}, 0xc0, v{V_GA}
    ; lane constants of the main loop
    v_and_b32 v{V_COFF}, 7, v1
    v_and_b32 v{V_SIDX}, 3, v1
    v_lshlrev_b32 v{V_COFF}, 4, v{V_COFF}
    v_mul_u32_u24 v{V_SIDX}, 0x1111, v{V_SIDX}
    v_mov_b32 v5, v{V_COFF}
    v_lshlrev_b32 v{V_P}, 2, v33
    v_bfe_u32 v39, v1, 2, 1
    v_lshl_add_u32 v{V_P}, v39, 1, v{V_P}
    v_bfe_u32 v39, v1, 3, 1
    v_add_u32 v{V_P}, v39, v{V_P}
    v_lshrrev_b32 v39, 5, v1
    v_lshl_or_b32 v{V_FK}, v39, 7, v{V_COFF}
    v_and_b32 v39, 1, v33
    v_lshl_or_b32 v{V_FK}, v39, 3, v{V_FK}
    v_lshrrev_b32 v{V_RA0}, 3, v1
    v_lshlrev_b32 v{V_RA0}, 2, v{V_RA0}
    v_add_u32 v{V_RA0}, {L_LIST}, v{V_RA0}
    v_mov_b64 {vr(V_A, 2)}, 0
    v_mov_b64 {vr(V_A + 2, 2)}, 0
""")
    srd(a, S_XI, 4, 5, N_NODES, stride=256)
    srd(a, S_OUT, 6, 7, N_NODES * 256)
    a(f"""
    s_mov_b32 s{S_ROUND}, 0
    s_mov_b32 s{S_VALID}, 0x00ff00ff
    s_mov_b32 s{S_VALID + 1}, 0x00ff00ff
    s_and_b32 s{S_V}, s{S_W}, 3
    s_lshl_b32 s{S_V}, s{S_V}, 2
    s_lshr_b32 s40, s{S_W}, 2
    s_add_u32 s{S_V}, s{S_V}, s40
    s_cmp_ge_u32 s{S_W}, 8
    s_cbranch_scc1 K2_TABB
    s_waitcnt vmcnt(5)
    s_branch K2_TABC
K2_TABB:
    s_waitcnt vmcnt({1 + (opt.get("spf", 0) // 8)})
{"    s_cmp_eq_u32 s10, 15" if opt.get("spf") else ""}
{"    s_cbranch_scc1 K2_TABC" if opt.get("spf") else ""}
{"    s_waitcnt vmcnt(1)" if opt.get("spf") else ""}
K2_TABC:
""")
    stamp(a, opt, 2)
    a(f"""
    v_and_b32 v38, 0xffff, v37
    v_lshrrev_b32 v37, 16, v37
    v_lshl_add_u32 v{V_SEG}, v38, 2, v{V_SEG}
    v_sub_u32 v{V_REM}, v37, v{V_REM}
""")
    seg_loads(a, "r0")
    a(f"""
    s_cmp_ge_u32 s{S_W}, 8
    s_cbranch_scc1 K2_XWB
    s_waitcnt vmcnt(5)
    s_branch K2_XWC
K2_XWB:
    s_waitcnt vmcnt({1 + (opt.get("spf", 0) // 8)})
{"    s_cmp_eq_u32 s10, 15" if opt.get("spf") else ""}
{"    s_cbranch_scc1 K2_XWC" if opt.get("spf") else ""}
{"    s_waitcnt vmcnt(1)" if opt.get("spf") else ""}
K2_XWC:
    ds_write_b128 v{V_TADDR}, v[40:43] offset:{L_XT}
""")
    seg_load_b(a, "r0")
    a(f"""
    s_waitcnt lgkmcnt(0)
    s_barrier
""")
    stamp(a, opt, 3)
    a(f"""
    s_cmp_ge_u32 s{S_W}, 8
    s_cbranch_scc1 K2_PF
""")
    B0 = V_X + 16
    QD = [V_D0, V_D1, 40, 44]
    BR = [B0, B0 + 16, B0 + 32, B0]

    def qreads_tile(tt):
        for ks in range(4):
            a(f"    ds_read_b128 {vr(BR[tt] + 4 * ks, 4)}, v{V_GA + ks} offset:{L_XT + tt * 4096}")

    def qmfma(tt):
        for ks in range(4):
            c = "0" if ks == 0 else vr(QD[tt], 4)
            a(f"    v_mfma_f32_16x16x32_bf16 {vr(QD[tt], 4)}, {vr(V_X + 4 * ks, 4)}, {vr(BR[tt] + 4 * ks, 4)}, {c}")

    for tt in range(3):
        qreads_tile(tt)
    a("    s_waitcnt vmcnt(1)")
    a(f"    s_mov_b32 s50, {hex(f32bits(QSCALE))}")
    a(f"    s_mov_b32 s51, s50")
    a("    s_waitcnt lgkmcnt(8)")
    qmfma(0)
    a("    s_waitcnt lgkmcnt(4)")
    qmfma(1)
    qreads_tile(3)
    a("    s_waitcnt lgkmcnt(4)")
    qmfma(2)
    a("    s_waitcnt lgkmcnt(0)")
    qmfma(3)
    for tt in range(4):
        if tt == 3:
            a("    s_nop 1")
        for i in range(2):
            a(f"    v_pk_mul_f32 {vr(QD[tt] + 2 * i, 2)}, {vr(QD[tt] + 2 * i, 2)}, s[50:51]")
        a(f"    v_cvt_pk_bf16_f32 v{80 + 2 * tt}, v{QD[tt]}, v{QD[tt] + 1}")
        a(f"    v_cvt_pk_bf16_f32 v{81 + 2 * tt}, v{QD[tt] + 2}, v{QD[tt] + 3}")
        a(f"    ds_write_b64 v{V_GADDR}, {vr(80 + 2 * tt, 2)} offset:{L_QT + tt * 4096}")
    npf = opt.get("pf2", 0)
    npi = (npf + 7) // 8
    a(f"""
    s_branch K2_PASS1
K2_PF:
""")
    for ks in range(4):
        a(f"    buffer_load_dwordx4 {vr(V_WV + 4 * ks, 4)}, v36, {ws}, s45 offen offset:{ks * 1024}")
    if npf:
        a(f"""
    s_lshr_b32 s40, s2, 3
    s_mul_i32 s40, s40, {782 * 128}
    s_sub_u32 s41, s{S_W}, 8
    s_lshl_b32 s46, s41, 13
    s_add_u32 s40, s40, s46
    s_add_u32 s40, s40, {opt.get("pf", 0) * 256 * 128}
    v_lshlrev_b32 v38, 7, v1
    v_add_u32 v38, s40, v38
""")
        for i in range(npi):
            a(f"""
    s_cmp_lt_u32 s41, {npf - 8 * i}
    s_cselect_b32 s46, 0, 0x40000000
    v_add_u32 v39, s46, v38
    buffer_load_dword v{95 - i}, v39, s[{S_XR}:{S_XR + 3}], 0 offen
""")
            if i + 1 < npi:
                a("    v_add_u32 v38, 0x10000, v38")
    AD, RK, BS = 64, 72, 80
    a(f"""
K2_PASS1:
    v_mov_b32 v{V_T}, 1
    v_lshlrev_b32 v{V_PA}, 2, v1
    v_mov_b32 v{V_APX}, {L_FLAG}
""")
    for pp in range(OPT["ns"] if (OPT["ns"] > 1 and not OPT.get("early")) else 0):
        a(f"    v_mov_b32 v{V_Q + 4 * pp + 1}, v{V_COFF}")
        a(f"    v_mov_b32 v{V_Q + 4 * pp + 3}, v{V_COFF}")
    a(f"""
    s_cmp_lt_u32 s{S_W}, 8
    s_cbranch_scc1 K2_SW_0
    s_cmp_lg_u32 s{S_ROUND}, 0
    s_cbranch_scc1 K2_SW_0
    s_waitcnt vmcnt({4 + npi})
    s_branch K2_SW_1
K2_SW_0:
    s_waitcnt vmcnt(0)
K2_SW_1:
""")
    stamp(a, opt, 4)
    for d in range(4):
        a(f"    v_cmp_lt_i32 s[{S_EX + 2 * d}:{S_EX + 2 * d + 1}], {d}, v{V_REM}")
    for d in range(4):
        a(f"    s_mov_b64 exec, s[{S_EX + 2 * d}:{S_EX + 2 * d + 1}]")
        a(f"    v_lshlrev_b32_sdwa v{AD + d}, 2, v{V_REC + d} dst_sel:DWORD dst_unused:UNUSED_PAD src0_sel:DWORD src1_sel:BYTE_3")
        a(f"    ds_add_rtn_u32 v{RK + d}, v{AD + d}, v{V_T}")
    a(f"""
    s_mov_b64 exec, -1
    s_cmp_eq_u32 s{S_HASB}, 0
    s_cbranch_scc1 K2_P1_NOB
""")
    for d in range(4):
        k = 4 + d
        a(f"    v_cmp_lt_i32 vcc, {16 + d}, v{V_REM}")
        a(f"    s_mov_b64 exec, vcc")
        a(f"    v_lshlrev_b32_sdwa v{AD + k}, 2, v{V_REC + k} dst_sel:DWORD dst_unused:UNUSED_PAD src0_sel:DWORD src1_sel:BYTE_3")
        a(f"    ds_add_rtn_u32 v{RK + k}, v{AD + k}, v{V_T}")
    a(f"""
    s_mov_b64 exec, -1
    v_cmp_lt_i32 vcc, 32, v{V_REM}
    s_cmp_eq_u64 vcc, 0
    s_cbranch_scc1 K2_P1_NOB
    s_mov_b64 exec, vcc
    ds_write_b32 v{V_APX}, v{V_T}
    s_mov_b64 exec, -1
K2_P1_NOB:
    s_waitcnt lgkmcnt(0)
    s_barrier
""")
    stamp(a, opt, 5)
    a(f"""
    ; per-node counts -> positions (lane = node): v_nend = inclusive sum, v_t = exclusive sum
    ds_read_b32 v{V_NEND}, v{V_PA}
    ds_read_b32 v{V_PB}, v{V_PA}
    ds_read_b32 v{V_APX}, v{V_APX}
    s_waitcnt lgkmcnt(0)
    v_readfirstlane_b32 s{S_MORE}, v{V_APX}
""")
    scan64(a, V_NEND)
    a(f"""
    s_nop 0
    v_readlane_b32 s{S_T}, v{V_NEND}, 63
    v_sub_u32 v{V_T}, v{V_NEND}, v{V_PB}
    v_add_u32 v{V_AP}, v{V_T}, v{V_NEND}
    v_cmp_lt_u32 s[{S_M}:{S_M + 1}], 0, v{V_PB}
""")
    for k in range(4):
        a(f"    ds_bpermute_b32 v{BS + k}, v{AD + k}, v{V_T}")
    a(f"""
    s_mul_i32 s40, s{S_V}, s{S_T}
    s_add_u32 s41, s40, s{S_T}
    s_add_u32 s40, s40, 7
    s_lshr_b32 s40, s40, 3
    s_add_u32 s41, s41, 7
    s_lshr_b32 s41, s41, 3
    v_cmp_le_u32 vcc, s40, v{V_AP}
    s_and_b64 s[{S_M}:{S_M + 1}], s[{S_M}:{S_M + 1}], vcc
    v_cmp_gt_u32 vcc, s41, v{V_AP}
    s_and_b64 s[{S_M}:{S_M + 1}], s[{S_M}:{S_M + 1}], vcc
    s_mov_b32 s{S_S}, 0
    s_mov_b32 s{S_REM}, 0
    s_cmp_eq_u64 s[{S_M}:{S_M + 1}], 0
    s_cbranch_scc1 K2_NOWORK_A
    s_ff1_i32_b64 s40, s[{S_M}:{S_M + 1}]
    s_flbit_i32_b64 s41, s[{S_M}:{S_M + 1}]
    s_sub_u32 s41, 63, s41
    v_readlane_b32 s{S_S}, v{V_T}, s40
    v_readlane_b32 s42, v{V_NEND}, s41
K2_NOWORK_A:
    s_waitcnt lgkmcnt(0)
""")
    for d in range(4):
        a(f"    s_mov_b64 exec, s[{S_EX + 2 * d}:{S_EX + 2 * d + 1}]")
        a(f"    v_add_lshl_u32 v{BS + d}, v{BS + d}, v{RK + d}, 2")
        a(f"    ds_write_b32 v{BS + d}, v{V_REC + d} offset:{L_LIST}")
    a(f"""
    s_mov_b64 exec, -1
    s_cmp_eq_u32 s{S_HASB}, 0
    s_cbranch_scc1 K2_P2_NOB
""")
    for k in range(4, 8):
        a(f"    ds_bpermute_b32 v{BS + k}, v{AD + k}, v{V_T}")
    a("    s_waitcnt lgkmcnt(0)")
    for d in range(4):
        k = 4 + d
        a(f"    v_cmp_lt_i32 vcc, {16 + d}, v{V_REM}")
        a(f"    s_mov_b64 exec, vcc")
        a(f"    v_add_lshl_u32 v{BS + k}, v{BS + k}, v{RK + k}, 2")
        a(f"    ds_write_b32 v{BS + k}, v{V_REC + k} offset:{L_LIST}")
    a(f"""
    s_mov_b64 exec, -1
K2_P2_NOB:
    s_cmp_eq_u64 s[{S_M}:{S_M + 1}], 0
    s_cbranch_scc1 K2_NOWORK_B
    s_sub_u32 s{S_REM}, s42, s{S_S}
    s_add_u32 s{S_REM}, s{S_REM}, 15
    s_lshr_b32 s{S_REM}, s{S_REM}, 4
    s_min_u32 s{S_REM}, s{S_REM}, 600
K2_NOWORK_B:
    s_lshl_b32 s40, s{S_S}, 2
    v_add_u32 v{V_RA}, s40, v{V_RA0}
    s_waitcnt lgkmcnt(0)
    s_barrier
""")
    stamp(a, opt, 6)
    if opt.get("diag"):
        a(f"    s_mov_b32 s{S_ST + 24}, s{S_REM}")
    a(f"""
    s_cmp_eq_u32 s{S_REM}, 0
    s_cbranch_scc1 K2_IDLE
""")
    ns = 1 if OPT.get("early") else OPT["ns"]
    PIDX = (lambda pp: (V_Q + 4 * pp, V_Q + 4 * pp + 2)) if ns > 1 else (lambda pp: V_IDX[0])
    for pp in range(ns):
        a(f"    ds_read_u16 v{PIDX(pp)[0]}, v{V_RA} offset:{pp * 64}")
        a(f"    ds_read_u16 v{PIDX(pp)[1]}, v{V_RA} offset:{pp * 64 + 32}")
    a(f"    ds_read_u16 v{V_QVA}, v{V_RA} offset:2")
    a(f"    ds_read_u16 v{V_QVB}, v{V_RA} offset:34")
    if OPT.get("tp"):
        a(f"""
    v_mov_b32 v{V_PM}, 0xffff
    s_cmp_eq_u32 s{S_REM}, 1
    s_cbranch_scc0 K2_PRO_FULL
    s_sub_u32 s40, s{S_E}, s{S_S}
    s_waitcnt lgkmcnt(2)
""")
        tail_patch(a, None)
        a("K2_PRO_FULL:")
    if OPT.get("prio"):
        a("    s_setprio 3")
    if ns == 4:
        park(a)
    for pp in range(ns):
        if pp > 0:
            a(f"    s_cmp_le_u32 s{S_REM}, {pp}")
            a(f"    s_cbranch_scc1 K2_PRO_DONE")
        a(f"    s_waitcnt lgkmcnt({min(15, 2 * (ns - pp))})" if ns < 4 else ("    s_waitcnt lgkmcnt(0)" if pp == 0 else ""))
        xload(a, V_X + 16 * pp, PIDX(pp)[0], 0)
        xload(a, V_X + 16 * pp, PIDX(pp)[1], 1)
        if OPT.get("prio") and pp < 2:
            a(f"    s_setprio {max(0, 1 - pp)}")
    a(f"""
K2_PRO_DONE:
    s_waitcnt lgkmcnt(0)
""")
    qreads(a)
    a(f"""
    ds_read_u16 v{V_QVA}, v{V_RA} offset:{64 + 2}
    ds_read_u16 v{V_QVB}, v{V_RA} offset:{64 + 34}
    ds_read_u16 v{V_IDX[0][0]}, v{V_RA} offset:{ns * 64}
    ds_read_u16 v{V_IDX[0][1]}, v{V_RA} offset:{ns * 64 + 32}
    s_sub_u32 s{S_REM}, s{S_REM}, 1
    s_mov_b32 s{S_PEND}, s{S_S}
    s_mov_b32 s{S_SEL}, {OPT["ns"]}
""")
    if OPT.get("prio"):
        a(f"""
    s_mov_b32 s{S_THR}, -1
    s_setprio 0
    s_cmp_lt_u32 s{S_REM}, {PT[0]}
    s_cbranch_scc1 K2_PRIO_SET
    s_mov_b32 s{S_THR}, {PT[0] - 1}
    s_setprio 1
    s_cmp_lt_u32 s{S_REM}, {PT[1]}
    s_cbranch_scc1 K2_PRIO_SET
    s_mov_b32 s{S_THR}, {PT[1] - 1}
    s_setprio 2
    s_cmp_lt_u32 s{S_REM}, {PT[2]}
    s_cbranch_scc1 K2_PRIO_SET
    s_mov_b32 s{S_THR}, {PT[2] - 1}
    s_setprio 3
K2_PRIO_SET:
""")
    a(f"""
    s_branch K2_NEXTNODE
K2_LOOP:
""")
    NS = OPT["ns"]
    for s in range(NS):
        step(a, s)
    a("    s_branch K2_STEP0")
    for s in range(NS):
        step_ool(a, s)
    a("K2_IDLE:")
    if NS == 4:
        park(a)
    a("    s_branch K2_LOOP_END")

    T0 = V_REC
    a(f"""
K2_FLUSH:
    s_lshl_b32 s{S_T}, s{S_NODE}, 8
    s_add_u32 s{S_T}, s{S_T}, {L_AGG}
    s_and_b32 s40, s{S_NODE}, 15
    s_lshl_b32 s40, s40, 4
    s_or_b32 s{S_T}, s{S_T}, s40
    v_xor_b32 v{V_APX}, s{S_T}, v{V_FK}
    s_nop 3
""")
    for i in range(4):
        a(f"    v_permlane32_swap_b32 v{V_D0 + i}, v{V_D1 + i}")
    for i in range(4):
        a(f"    v_add_f32_dpp v{V_D0 + i}, v{V_D1 + i}, v{V_D0 + i} row_shl:8 row_mask:0xf bank_mask:0x3")
    a(f"""
    s_cmp_lg_u32 s{S_ROUND}, 0
    s_cbranch_scc1 K2_FLUSH_RMW
K2_FLUSH_PACK:
    v_cvt_pk_bf16_f32 v{T0 + 0}, v{V_D0 + 0}, v{V_D0 + 1}
    v_cvt_pk_bf16_f32 v{T0 + 1}, v{V_D0 + 2}, v{V_D0 + 3}
    s_mov_b64 exec, s[{S_VALID}:{S_VALID + 1}]
    ds_write_b64 v{V_APX}, {vr(T0, 2)}
    s_mov_b64 exec, -1
K2_NEXTNODE:
    s_mov_b32 s{S_NEND}, -1
    s_cmp_eq_u64 s[{S_M}:{S_M + 1}], 0
    s_cbranch_scc1 K2_FLUSH_RET
    s_ff1_i32_b64 s{S_NODE}, s[{S_M}:{S_M + 1}]
    s_bitset0_b64 s[{S_M}:{S_M + 1}], s{S_NODE}
    v_readlane_b32 s{S_NEND}, v{V_NEND}, s{S_NODE}
""")
    for i in range(4):
        a(f"    v_mov_b64 {vr(V_D0 + 2 * i, 2)}, 0")
    a(f"""
    s_cmp_le_u32 s{S_NEND}, s{S_PEND}
    s_cbranch_scc1 K2_FLUSH_AGAIN
K2_FLUSH_RET:
""")
    for s in range(NS):
        a(f"    s_cmp_eq_u32 s{S_SEL}, {s}")
        a(f"    s_cbranch_scc1 K2_RET{s}")
    a("    s_branch K2_LOOP")
    a("K2_FLUSH_AGAIN:")
    for s in range(NS - 1):
        a(f"    s_cmp_eq_u32 s{S_SEL}, {s}")
        a(f"    s_cbranch_scc1 K2_BND{s}")
    a(f"    s_branch K2_BND{NS - 1}")
    a(f"""
K2_FLUSH_RMW:
    ds_read_b64 {vr(T0, 2)}, v{V_APX}
    s_waitcnt lgkmcnt(0)
    v_lshlrev_b32 v{T0 + 2}, 16, v{T0}
    v_and_b32 v{T0 + 3}, 0xffff0000, v{T0}
    v_add_f32 v{V_D0 + 0}, v{V_D0 + 0}, v{T0 + 2}
    v_add_f32 v{V_D0 + 1}, v{V_D0 + 1}, v{T0 + 3}
    v_lshlrev_b32 v{T0 + 2}, 16, v{T0 + 1}
    v_and_b32 v{T0 + 3}, 0xffff0000, v{T0 + 1}
    v_add_f32 v{V_D0 + 2}, v{V_D0 + 2}, v{T0 + 2}
    v_add_f32 v{V_D0 + 3}, v{V_D0 + 3}, v{T0 + 3}
    s_branch K2_FLUSH_PACK

K2_LOOP_END:
""")
    if OPT.get("prio"):
        a("    s_setprio 0")
    a(f"""
    s_cmp_lg_u32 s{S_MORE}, 0
    s_cbranch_scc1 K2_MORE
""")
    if NS == 4:
        a(f"""
    s_cmp_lt_u32 s{S_W}, 8
    s_cbranch_scc1 K2_NOFETCH
    s_and_b32 s40, s{S_W}, 7
    s_lshl_b32 s40, s40, 12
    s_add_u32 s40, s40, {L_WV}
    v_lshlrev_b32 v{V_PA}, 4, v1
    v_add_u32 v{V_PA}, s40, v{V_PA}
""")
        for ks in range(4):
            a(f"    ds_read_b128 {vr(V_WV + 4 * ks, 4)}, v{V_PA} offset:{ks * 1024}")
    a(f"""
K2_NOFETCH:
    s_waitcnt vmcnt(0) lgkmcnt(0)
""")
    stamp(a, opt, 7)
    a(f"""
    s_barrier
""")
    stamp(a, opt, 8)
    a(f"""
    s_cmp_lt_u32 s{S_W}, 8
    s_cbranch_scc1 K2_EPI_WAIT
""")
    EB = V_Q
    ED = [V_D0, V_D1, V_REC, V_REC + 4]
    for tt in range(4):
        for ks in range(4):
            a(f"    ds_read_b128 {vr(EB + (tt * 4 + ks) * 4, 4)}, v{V_GA + ks} offset:{L_AGG + tt * 4096}")
    for tt in range(4):
        a(f"    s_waitcnt lgkmcnt({4 * (3 - tt)})")
        for ks in range(4):
            c = "0" if ks == 0 else vr(ED[tt], 4)
            a(f"    v_mfma_f32_16x16x32_bf16 {vr(ED[tt], 4)}, {vr(V_WV + 4 * ks, 4)}, {vr(EB + (tt * 4 + ks) * 4, 4)}, {c}")
    a("    s_nop 3")
    for tt in range(4):
        if tt == 3:
            a("    s_nop 3")
        a(f"    v_cvt_pk_bf16_f32 v{16 + 2 * tt}, v{ED[tt]}, v{ED[tt] + 1}")
        a(f"    v_cvt_pk_bf16_f32 v{17 + 2 * tt}, v{ED[tt] + 2}, v{ED[tt] + 3}")
        a(f"    ds_write_b64 v{V_GADDR}, {vr(16 + 2 * tt, 2)} offset:{L_XT + tt * 4096}")
    a(f"""
K2_EPI_WAIT:
    s_waitcnt lgkmcnt(0)
    s_barrier
    ds_read_b128 v[40:43], v{V_TADDR} offset:{L_XT}
    s_waitcnt lgkmcnt(0)
    buffer_store_dwordx4 v[40:43], v{V_OOFF}, s[{S_OUT}:{S_OUT + 3}], 0 offen{FL[opt.get("ost", 2)]}
""")
    stamp(a, opt, 9)
    if opt.get("diag"):
        a("    s_waitcnt vmcnt(0)")
    stamp(a, opt, 10)
    stamp(a, opt, 11, real=True)
    dump_stamps(a, opt, 13, 8, 9, NW, DIAG_OFF + 0x100000)
    a(f"""
    s_endpgm

K2_MORE:
    s_waitcnt vmcnt(0) lgkmcnt(0)
    s_barrier
    s_add_u32 s{S_ROUND}, s{S_ROUND}, 1
    v_and_b32 v39, 127, v0
    v_lshlrev_b32 v39, 2, v39
    v_mov_b32 v38, 0
    ds_write_b32 v39, v38
    v_add_u32 v{V_SEG}, 128, v{V_SEG}
    v_subrev_u32 v{V_REM}, 32, v{V_REM}
""")
    seg_loads(a, "rn")
    seg_load_b(a, "rn")
    a(f"""
    s_waitcnt lgkmcnt(0)
    s_barrier
    s_branch K2_PASS1
K2_END:
    s_endpgm
""")


HEADER = f"""; Kernarg layout for this problem (64 bytes, ptrs only, base s[0:1]):
; Launch 1 buckets the edges by (dst & 255) and transposes the weights into d_ws.
; Launch 2 owns 49 destination nodes per workgroup and produces the output rows.
; @launch kernel={K1} grid=(272,1,1) block=(256,1,1) lds=8320
; @launch kernel={MAIN} grid=(256,1,1) block=({NW * 64},1,1) lds=@LDS@
.amdgcn_target "amdgcn-amd-amdhsa--gfx950"
.text
"""


def kd(name, vgpr, sgpr):
    acc = (vgpr + 3) // 4 * 4
    return f"""
.p2align 6
.amdhsa_kernel {name}
  .amdhsa_next_free_vgpr {vgpr}
  .amdhsa_next_free_sgpr {sgpr}
  .amdhsa_accum_offset {acc}
  .amdhsa_group_segment_fixed_size 0
  .amdhsa_kernarg_size 64
  .amdhsa_user_sgpr_count 2
  .amdhsa_user_sgpr_kernarg_segment_ptr 1
  .amdhsa_system_sgpr_workgroup_id_x 1
  .amdhsa_float_denorm_mode_32 3
.end_amdhsa_kernel
"""


def generate(opt=None):
    opt = opt or {}
    OPT.clear()
    OPT.update(opt)
    OPT.setdefault("early", 3)
    OPT.setdefault("tp", 0)
    OPT.setdefault("ns", 2 if OPT.get("early") else 1)
    OPT.setdefault("prio", 1)
    OPT.setdefault("pf2", 5)
    opt = dict(OPT)
    PARK_N[0] = 0
    if "pt" in opt:
        v = opt["pt"]
        PT[:] = [v // 100, (v // 10) % 10, v % 10]
    a = Asm()
    hdr = HEADER.replace("@LDS@", str(L_END if OPT["ns"] == 4 else L_WV))
    if opt.get("k1w"):
        hdr = hdr.replace("grid=(272,1,1) block=(256,1,1) lds=8320", "grid=(272,1,1) block=(448,1,1) lds=9216")
    a(hdr)
    (gen_k1_wide if opt.get("k1w") else gen_k1)(a, opt)
    gen_k2(a, opt)
    a('.section .rodata,"a"')
    sg = 96 if opt.get("diag") else 64
    a(kd(K1, 80, sg))
    a(kd(MAIN, 128, sg))
    return a.text()


if __name__ == "__main__":
    out = sys.argv[1] if len(sys.argv) > 1 else "gather_scatter__kernel_systems_refs_featgraph__graph.s"
    opt = {}
    for kv in sys.argv[2:]:
        k, _, v = kv.partition("=")
        opt[k] = int(v) if v else 1
    open(out, "w").write(generate(opt))
    print("wrote", out)
```

```python
import math
import sys

OPT = {}
FL = ["", " sc1", " nt", " sc0 sc1", " sc0 sc1 nt"]
MAIN = "gather_scatter__kernel_systems_refs_featgraph__graph_kernel"
K1 = "gs_bucket_kernel"

N_NODES = 12500
N_EDGES = 400000
CHUNK = 1564
REC_STRIDE = 6400
REC_OFF = 0
TAB_OFF = 0x190000
WF_OFF = 0x1D0000
WS_SIZE = 0x1E0000

L_CNT = 0
L_FLAG = 256
L_AGG = 1024
L_QT = 17408
L_XT = 33792
L_LIST = 50176
L_WV = 84224
L_END = 116992

NW = 16
P = 3

QSCALE = -math.log2(math.e) / math.sqrt(128.0)


def f32bits(x):
    import struct
    return struct.unpack("<I", struct.pack("<f", x))[0]


class Asm:
    def __init__(self):
        self.lines = []

    def __call__(self, text=""):
        for ln in text.strip("\n").split("\n"):
            self.lines.append(ln.rstrip())

    def text(self):
        return "\n".join(self.lines) + "\n"


def vr(a, n):
    return f"v[{a}:{a + n - 1}]"


def srd(a, dst, lo, hi, nrec, stride=0):
    a(f"    s_mov_b32 s{dst}, s{lo}")
    a(f"    s_and_b32 s{dst + 1}, s{hi}, 0xffff")
    if stride:
        a(f"    s_or_b32 s{dst + 1}, s{dst + 1}, {hex(stride << 16)}")
    a(f"    s_mov_b32 s{dst + 2}, {hex(nrec)}")
    a(f"    s_mov_b32 s{dst + 3}, 0x20000")


DIAG_OFF = 0x400000
S_ST = 60


def stamp(a, opt, i, real=False):
    if not opt.get("diag"):
        return
    op = "s_memrealtime" if real else "s_memtime"
    a(f"    {op} s[{S_ST + 2 * i}:{S_ST + 2 * i + 1}]")
    a("    s_waitcnt lgkmcnt(0)")


def dump_stamps(a, opt, n, ptr_lo, ptr_hi, waves_per_wg, base):
    if not opt.get("diag"):
        return
    a(f"    s_mov_b32 s52, s{ptr_lo}")
    a(f"    s_and_b32 s53, s{ptr_hi}, 0xffff")
    a(f"    s_mov_b32 s54, 0x1000000")
    a(f"    s_mov_b32 s55, 0x20000")
    a(f"    v_mov_b32 v2, 0")
    for i in range(n):
        a(f"    v_writelane_b32 v2, s{S_ST + 2 * i}, {i}")
    a(f"    v_lshrrev_b32 v3, 6, v0")
    a(f"    s_mul_i32 s56, s2, {waves_per_wg}")
    a(f"    v_add_u32 v3, s56, v3")
    a(f"    v_lshlrev_b32 v3, 6, v3")
    a(f"    v_and_b32 v4, 63, v0")
    a(f"    v_lshl_add_u32 v3, v4, 2, v3")
    a(f"    v_add_u32 v3, {hex(base)}, v3")
    a(f"    s_mov_b64 exec, 0xffff")
    a(f"    buffer_store_dword v2, v3, s[52:55], 0 offen")
    a(f"    s_mov_b64 exec, -1")


def scan64(a, reg):
    for ctl in ("row_shr:1", "row_shr:2", "row_shr:4", "row_shr:8"):
        a(f"    s_nop 1")
        a(f"    v_add_u32_dpp v{reg}, v{reg}, v{reg} {ctl} row_mask:0xf bank_mask:0xf bound_ctrl:1")
    a(f"    s_nop 1")
    a(f"    v_add_u32_dpp v{reg}, v{reg}, v{reg} row_bcast:15 row_mask:0xa bank_mask:0xf")
    a(f"    s_nop 1")
    a(f"    v_add_u32_dpp v{reg}, v{reg}, v{reg} row_bcast:31 row_mask:0xc bank_mask:0xf")


def k1_prefetch(a, opt, where):
    if opt.get("pfpos", 0) != where:
        return
    n = opt.get("pf", 0)
    if n:
        srd(a, 40, 34, 35, N_NODES * 256)
        a(f"""
    s_lshr_b32 s38, s2, 3
    s_mul_i32 s38, s38, {782 * 128}
    v_lshlrev_b32 v64, 7, v0
    v_add_u32 v64, s38, v64
""")
        for i in range(n):
            if i:
                a(f"    v_add_u32 v64, 0x8000, v64")
            if i == 3:
                a(f"    v_cmp_gt_u32 vcc, {782 - 768}, v0")
                a(f"    s_mov_b64 exec, vcc")
                a(f"    s_cbranch_execz K1_PF_DONE")
            a(f"    buffer_load_dword v{65 + i}, v64, s[40:43], 0 offen")
        if n > 3:
            a("K1_PF_DONE:")
            a("    s_mov_b64 exec, -1")
    if opt.get("pfm"):
        srd(a, 40, 34, 35, N_NODES * 256)
        a(f"""
    s_mul_i32 s38, s2, {98 * 128}
    v_lshlrev_b32 v64, 7, v0
    v_add_u32 v64, s38, v64
    v_mov_b32 v66, 0x7ffffff0
    v_cmp_gt_u32 vcc, 98, v0
    s_nop 1
    v_cndmask_b32 v64, v66, v64, vcc
    buffer_load_dword v65, v64, s[40:43], 0 offen
""")
    if opt.get("codepf"):
        a(f"""
    s_getpc_b64 s[44:45]
K1_PC:
    s_add_u32 s44, s44, {MAIN}-K1_PC
    s_addc_u32 s45, s45, 0
    v_and_b32 v70, 63, v0
    v_lshlrev_b32 v70, 7, v70
    v_min_u32 v70, K2_END-{MAIN}, v70
    global_load_dword v71, v70, s[44:45]
""")
    if opt.get("touch"):
        srd(a, 40, 36, 37, N_NODES * 256)
        a(f"""
    v_and_b32 v72, 1, v0
    v_lshlrev_b32 v72, 21, v72
    buffer_load_dword v73, v72, s[40:43], 0 offen
""")
        srd(a, 40, 34, 35, N_NODES * 256)
        a(f"""
    buffer_load_dword v74, v72, s[40:43], 0 offen
""")

def gen_k1(a, opt):
    a(f"""
.globl {K1}
.p2align 8
.type {K1},@function
{K1}:
    s_cmp_ge_u32 s2, 272
    s_cbranch_scc1 K1_END
    s_load_dwordx4 s[4:7], s[0:1], 8
    s_load_dwordx4 s[8:11], s[0:1], 24
    s_load_dwordx2 s[12:13], s[0:1], 56
    s_load_dwordx2 s[34:35], s[0:1], 0
    s_load_dwordx2 s[36:37], s[0:1], 40
    s_cmp_ge_u32 s2, 256
    s_cbranch_scc1 K1_WPREP
""")
    stamp(a, opt, 0, real=True)
    stamp(a, opt, 1)
    a(f"""
    v_lshlrev_b32 v1, 2, v0
    v_mov_b32 v2, 0
    ds_write_b32 v1, v2
    s_mul_i32 s14, s2, {CHUNK * 4}
    v_lshlrev_b32 v3, 4, v0
    v_add_u32 v4, s14, v3
    v_add_u32 v5, 0x1000, v4
    s_movk_i32 s15, {(CHUNK - 1024) // 4}
    s_cmp_eq_u32 s2, 255
    s_cselect_b32 s15, {(N_EDGES - 255 * CHUNK - 1024) // 4}, s15
    s_and_b32 s28, s2, 7
    s_lshl_b32 s28, s28, 5
    s_lshr_b32 s29, s2, 3
    s_add_u32 s28, s28, s29
    v_mov_b32 v6, 1
    v_cmp_gt_u32 vcc, s15, v0
    s_mov_b64 s[32:33], vcc
    s_waitcnt lgkmcnt(0)
""")
    srd(a, 16, 4, 5, N_EDGES * 4)
    srd(a, 20, 6, 7, N_EDGES * 4)
    srd(a, 24, 12, 13, WS_SIZE)
    a(f"""
    buffer_load_dwordx4 v[8:11], v4, s[20:23], 0 offen
    buffer_load_dwordx4 v[12:15], v4, s[16:19], 0 offen
    s_mov_b64 exec, s[32:33]
    s_cbranch_execz K1_A
    buffer_load_dwordx4 v[16:19], v5, s[20:23], 0 offen
    buffer_load_dwordx4 v[20:23], v5, s[16:19], 0 offen
K1_A:
    s_mov_b64 exec, -1
""")
    npf0 = 0
    if opt.get("pfpos", 0) == 0:
        npf0 = opt.get("pf", 0) + (1 if opt.get("codepf") else 0) + (2 if opt.get("touch") else 0) + (1 if opt.get("pfm") else 0)
    k1_prefetch(a, opt, 0)
    if npf0 and opt.get("pf", 0) > 3:
        npf0 -= 1
    a(f"""
    s_barrier
    s_waitcnt vmcnt({npf0})
""")
    k1_prefetch(a, opt, 1)
    stamp(a, opt, 2)

    def edges(dbase, sbase, abase, rbase):
        for e in range(4):
            a(f"    v_lshlrev_b32_sdwa v{abase + e}, 2, v{dbase + e} dst_sel:DWORD dst_unused:UNUSED_PAD src0_sel:DWORD src1_sel:BYTE_0")
            a(f"    ds_add_rtn_u32 v{rbase + e}, v{abase + e}, v6")
        for e in range(4):
            a(f"    v_lshrrev_b32 v7, 8, v{dbase + e}")
            a(f"    v_lshl_or_b32 v{sbase + e}, v7, 24, v{sbase + e}")
            a(f"    v_and_b32 v7, 7, v7")
            a(f"    v_lshl_or_b32 v{sbase + e}, v7, 20, v{sbase + e}")

    edges(8, 12, 24, 32)
    a("""
    s_mov_b64 exec, s[32:33]
    s_cbranch_execz K1_B
""")
    edges(16, 20, 28, 36)
    a("""
K1_B:
    s_mov_b64 exec, -1
    s_waitcnt lgkmcnt(0)
    s_barrier
""")
    stamp(a, opt, 3)
    a("""
    v_and_b32 v48, 63, v0
    v_lshlrev_b32 v48, 4, v48
    ds_read_b128 v[52:55], v48
    ds_read_b32 v56, v1
    s_waitcnt lgkmcnt(0)
    v_add_u32 v49, v52, v53
    v_add_u32 v50, v49, v54
    v_add_u32 v51, v50, v55
    v_mov_b32 v57, v51
""")
    scan64(a, 57)
    a(f"""
    v_sub_u32 v58, v57, v51
    v_add_u32 v59, v58, v52
    v_add_u32 v60, v58, v49
    v_add_u32 v61, v58, v50
    ds_write_b128 v48, v[58:61] offset:1024
""")
    for e in range(4):
        a(f"    ds_read_b32 v{40 + e}, v{24 + e} offset:1024")
    a("    ds_read_b32 v62, v1 offset:1024")
    a("""
    s_mov_b64 exec, s[32:33]
    s_cbranch_execz K1_C
""")
    for e in range(4):
        a(f"    ds_read_b32 v{44 + e}, v{28 + e} offset:1024")
    a("    s_waitcnt lgkmcnt(0)")
    for e in range(4):
        a(f"    v_add_lshl_u32 v{44 + e}, v{44 + e}, v{36 + e}, 2")
        a(f"    ds_write_b32 v{44 + e}, v{20 + e} offset:2048")
    a("""
K1_C:
    s_mov_b64 exec, -1
    s_waitcnt lgkmcnt(0)
""")
    for e in range(4):
        a(f"    v_add_lshl_u32 v{40 + e}, v{40 + e}, v{32 + e}, 2")
        a(f"    ds_write_b32 v{40 + e}, v{12 + e} offset:2048")
    a(f"""
    v_lshl_or_b32 v62, v56, 16, v62
    v_lshlrev_b32 v63, 10, v0
    s_lshl_b32 s29, s28, 2
    s_add_u32 s29, s29, {hex(TAB_OFF)}
    buffer_store_dword v62, v63, s[24:27], s29 offen
    s_mul_i32 s30, s28, {REC_STRIDE}
    v_add_u32 v5, 0x1000, v3
    s_waitcnt lgkmcnt(0)
    s_barrier
    ds_read_b128 v[8:11], v3 offset:2048
    s_mov_b64 exec, s[32:33]
    s_cbranch_execz K1_D
    ds_read_b128 v[12:15], v3 offset:6144
    s_waitcnt lgkmcnt(0)
    buffer_store_dwordx4 v[12:15], v5, s[24:27], s30 offen{FL[opt.get("rst", 0)]}
K1_D:
    s_mov_b64 exec, -1
    s_waitcnt lgkmcnt(0)
    buffer_store_dwordx4 v[8:11], v3, s[24:27], s30 offen{FL[opt.get("rst", 0)]}
""")
    stamp(a, opt, 4)
    if opt.get("diag"):
        a("    s_waitcnt vmcnt(0)")
    stamp(a, opt, 5)
    stamp(a, opt, 6, real=True)
    dump_stamps(a, opt, 7, 12, 13, 4, DIAG_OFF)
    a(f"""
    s_endpgm

K1_WPREP:
    s_sub_u32 s14, s2, 256
    s_lshr_b32 s15, s14, 3
    s_and_b32 s28, s14, 7
    v_and_b32 v1, 15, v0
    v_bfe_u32 v2, v0, 4, 2
    v_lshrrev_b32 v3, 6, v0
    v_lshlrev_b32 v3, 13, v3
    v_lshl_add_u32 v3, v2, 11, v3
    v_lshl_add_u32 v3, v1, 1, v3
    s_lshl_b32 s29, s28, 5
    v_add_u32 v3, s29, v3
    v_lshlrev_b32 v4, 4, v0
    s_lshl_b32 s30, s14, 12
    s_add_u32 s30, s30, {hex(WF_OFF)}
    s_cmp_eq_u32 s15, 0
    s_waitcnt lgkmcnt(0)
    s_cselect_b32 s16, s8, s10
    s_cselect_b32 s17, s9, s11
    s_and_b32 s17, s17, 0xffff
    s_mov_b32 s18, 0x8000
    s_mov_b32 s19, 0x20000
""")
    srd(a, 24, 12, 13, WS_SIZE)
    for j in range(8):
        a(f"    buffer_load_ushort v{8 + j}, v3, s[16:19], 0 offen offset:{j * 256}")
    a("    s_waitcnt vmcnt(0)")
    for j in range(4):
        a(f"    v_lshl_or_b32 v{16 + j}, v{9 + 2 * j}, 16, v{8 + 2 * j}")
    a(f"""
    buffer_store_dwordx4 v[16:19], v4, s[24:27], s30 offen
K1_END:
    s_endpgm
""")


def gen_k1_wide(a, opt):
    a(f"""
.globl {K1}
.p2align 8
.type {K1},@function
{K1}:
    s_cmp_ge_u32 s2, 272
    s_cbranch_scc1 K1_END
    s_load_dwordx4 s[4:7], s[0:1], 8
    s_load_dwordx2 s[12:13], s[0:1], 56
    s_load_dwordx4 s[8:11], s[0:1], 24
    s_cmp_ge_u32 s2, 256
    s_cbranch_scc1 K1_WPREP
""")
    stamp(a, opt, 0, real=True)
    stamp(a, opt, 1)
    a(f"""
    s_mul_i32 s14, s2, {CHUNK * 4}
    v_lshlrev_b32 v3, 4, v0
    v_add_u32 v4, s14, v3
    s_movk_i32 s15, {CHUNK // 4}
    s_cmp_eq_u32 s2, 255
    s_cselect_b32 s15, {(N_EDGES - 255 * CHUNK) // 4}, s15
    v_cmp_gt_u32 vcc, s15, v0
    s_mov_b64 s[32:33], vcc
    v_mov_b32 v7, 0x7ffffff0
    v_cndmask_b32 v4, v7, v4, vcc
    s_waitcnt lgkmcnt(0)
""")
    srd(a, 20, 6, 7, N_EDGES * 4)
    a("    buffer_load_dwordx4 v[8:11], v4, s[20:23], 0 offen")
    srd(a, 16, 4, 5, N_EDGES * 4)
    a("    buffer_load_dwordx4 v[12:15], v4, s[16:19], 0 offen")
    srd(a, 24, 12, 13, WS_SIZE)
    a(f"""
    v_and_b32 v1, 255, v0
    v_lshlrev_b32 v1, 2, v1
    v_mov_b32 v2, 0
    ds_write_b32 v1, v2
    s_and_b32 s28, s2, 7
    s_lshl_b32 s28, s28, 5
    s_lshr_b32 s29, s2, 3
    s_add_u32 s28, s28, s29
    v_mov_b32 v6, 1
    v_and_b32 v48, 63, v0
    v_lshlrev_b32 v48, 4, v48
    v_lshlrev_b32 v63, {2 if opt.get("tabp") else 10}, v0
    s_lshl_b32 s29, s28, {10 if opt.get("tabp") else 2}
    s_add_u32 s29, s29, {hex(TAB_OFF)}
    s_mul_i32 s30, s28, {REC_STRIDE}
    s_waitcnt lgkmcnt(0)
    s_barrier
    s_waitcnt vmcnt(0)
""")
    stamp(a, opt, 2)
    a("    s_mov_b64 exec, s[32:33]")
    for e in range(4):
        a(f"    v_lshlrev_b32_sdwa v{24 + e}, 2, v{8 + e} dst_sel:DWORD dst_unused:UNUSED_PAD src0_sel:DWORD src1_sel:BYTE_0")
        a(f"    ds_add_rtn_u32 v{32 + e}, v{24 + e}, v6")
    for e in range(4):
        a(f"    v_lshrrev_b32 v7, 8, v{8 + e}")
        a(f"    v_lshl_or_b32 v{12 + e}, v7, 24, v{12 + e}")
        a(f"    v_and_b32 v7, 7, v7")
        a(f"    v_lshl_or_b32 v{12 + e}, v7, 20, v{12 + e}")
    a("""
    s_mov_b64 exec, -1
    s_waitcnt lgkmcnt(0)
    s_barrier
""")
    stamp(a, opt, 3)
    a("""
    ds_read_b128 v[52:55], v48
    ds_read_b32 v56, v1
    s_waitcnt lgkmcnt(1)
    v_add_u32 v49, v52, v53
    v_add_u32 v50, v49, v54
    v_add_u32 v57, v50, v55
    v_add_u32 v51, v50, v55
""")
    scan64(a, 57)
    a(f"""
    v_sub_u32 v58, v57, v51
    v_add_u32 v59, v58, v52
    v_add_u32 v60, v58, v49
    v_add_u32 v61, v58, v50
    ds_write_b128 v48, v[58:61] offset:1024
""")
    for e in range(4):
        a(f"    ds_read_b32 v{40 + e}, v{24 + e} offset:1024")
    a(f"""
    ds_read_b32 v62, v1 offset:1024
    s_mov_b64 exec, s[32:33]
    s_waitcnt lgkmcnt(1)
""")
    for e in range(4):
        a(f"    v_add_lshl_u32 v{40 + e}, v{40 + e}, v{32 + e}, 2")
        a(f"    ds_write_b32 v{40 + e}, v{12 + e} offset:2048")
    a(f"""
    s_mov_b64 exec, -1
    v_cmp_gt_u32 vcc, 256, v0
    s_waitcnt lgkmcnt(4)
    v_lshl_or_b32 v62, v56, 16, v62
    s_mov_b64 exec, vcc
    s_cbranch_execz K1_NOTAB
    buffer_store_dword v62, v63, s[24:27], s29 offen
K1_NOTAB:
    s_mov_b64 exec, -1
    s_waitcnt lgkmcnt(0)
    s_barrier
    ds_read_b128 v[8:11], v3 offset:2048
    s_mov_b64 exec, s[32:33]
    s_cbranch_execz K1_D
    s_waitcnt lgkmcnt(0)
    buffer_store_dwordx4 v[8:11], v3, s[24:27], s30 offen{FL[opt.get("rst", 0)]}
K1_D:
    s_mov_b64 exec, -1
""")
    stamp(a, opt, 4)
    if opt.get("diag"):
        a("    s_waitcnt vmcnt(0)")
    stamp(a, opt, 5)
    stamp(a, opt, 6, real=True)
    dump_stamps(a, opt, 7, 12, 13, 7, DIAG_OFF)
    a(f"""
    s_endpgm

K1_WPREP:
    v_cmp_gt_u32 vcc, 256, v0
    s_mov_b64 exec, vcc
    s_cbranch_execz K1_END
    s_sub_u32 s14, s2, 256
    s_lshr_b32 s15, s14, 3
    s_and_b32 s28, s14, 7
    v_and_b32 v1, 15, v0
    v_bfe_u32 v2, v0, 4, 2
    v_lshrrev_b32 v3, 6, v0
    v_lshlrev_b32 v3, 13, v3
    v_lshl_add_u32 v3, v2, 11, v3
    v_lshl_add_u32 v3, v1, 1, v3
    s_lshl_b32 s29, s28, 5
    v_add_u32 v3, s29, v3
    v_lshlrev_b32 v4, 4, v0
    s_lshl_b32 s30, s14, 12
    s_add_u32 s30, s30, {hex(WF_OFF)}
    s_cmp_eq_u32 s15, 0
    s_waitcnt lgkmcnt(0)
    s_cselect_b32 s16, s8, s10
    s_cselect_b32 s17, s9, s11
    s_and_b32 s17, s17, 0xffff
    s_mov_b32 s18, 0x8000
    s_mov_b32 s19, 0x20000
""")
    srd(a, 24, 12, 13, WS_SIZE)
    for j in range(8):
        a(f"    buffer_load_ushort v{8 + j}, v3, s[16:19], 0 offen offset:{j * 256}")
    a("    s_waitcnt vmcnt(0)")
    for j in range(4):
        a(f"    v_lshl_or_b32 v{16 + j}, v{9 + 2 * j}, 16, v{8 + 2 * j}")
    a(f"""
    buffer_store_dwordx4 v[16:19], v4, s[24:27], s30 offen
K1_END:
    s_endpgm
""")


V_IDX = [(2, 4), (116, 118)]
V_COFF = 3
V_SIDX, V_P, V_RA, V_FK, V_NEND = 6, 7, 8, 9, 10
V_QVA, V_QVB = 11, 12
V_SEG = 13
V_PA, V_PB, V_T, V_AP, V_APX = 14, 15, 16, 17, 18
V_REM = 19
V_A = 20
V_D0, V_D1 = 24, 28
V_Q = 32
V_X = 48
V_WV = 96
V_REC = 112
V_GA = 120
V_RA0, V_OOFF, V_GADDR, V_TADDR = 124, 125, 126, 127
V_PM = 88
NS = 4
S_KEY, S_W, S_ROUND = 3, 10, 11
S_XI, S_XR, S_OUT, S_WS = 12, 16, 20, 24
S_S, S_PEND, S_NEND, S_REM = 28, 29, 30, 31
S_M, S_NODE, S_SEL, S_SPLIT, S_T = 32, 34, 35, 36, 37
S_VALID = 38
S_HASB = 43
S_V, S_MORE, S_THR = 47, 46, 48
S_EX = 52
S_E = 42
PT = [1, 3, 5]


def seg_loads(a, tag):
    a(f"""
    buffer_load_dwordx4 {vr(V_REC, 4)}, v{V_SEG}, s[{S_WS}:{S_WS + 3}], 0 offen
""")


def seg_load_b(a, tag):
    a(f"""
    v_cmp_lt_i32 vcc, 16, v{V_REM}
    s_mov_b32 s{S_HASB}, 0
    s_cmp_eq_u64 vcc, 0
    s_cbranch_scc1 K2_NOB_{tag}
    s_mov_b32 s{S_HASB}, 1
    buffer_load_dwordx4 {vr(V_REC + 4, 4)}, v{V_SEG}, s[{S_WS}:{S_WS + 3}], 0 offen offset:64
K2_NOB_{tag}:
""")


def a_setup(a, src):
    a(f"    v_mov_b32_dpp v{V_A + 0}, v{src} quad_perm:[0,1,2,3] row_mask:0xf bank_mask:0x5")
    a(f"    v_mov_b32_dpp v{V_A + 1}, v{src} row_shr:4 row_mask:0xf bank_mask:0xa")
    a(f"    v_mov_b32_dpp v{V_A + 2}, v{src} row_shl:4 row_mask:0xf bank_mask:0x5")
    a(f"    v_mov_b32_dpp v{V_A + 3}, v{src} quad_perm:[0,1,2,3] row_mask:0xf bank_mask:0xa")


def smf(a, X):
    a(f"    v_smfmac_f32_16x16x64_bf16 {vr(V_D0, 4)}, {vr(V_A, 4)}, {vr(X, 8)}, v{V_SIDX}")
    a(f"    v_smfmac_f32_16x16x64_bf16 {vr(V_D1, 4)}, {vr(V_A, 4)}, {vr(X + 8, 8)}, v{V_SIDX}")


def xload(a, X, idx, half):
    if OPT.get("noload"):
        return
    s = f"s[{S_XI}:{S_XI + 3}]"
    fl = ["", " sc0", " sc1", " sc0 sc1"][OPT.get("xfl", 0)]
    a(f"    buffer_load_dwordx4 {vr(X + 4 * half, 4)}, {vr(idx, 2)}, {s}, 0 idxen offen{fl}")
    a(f"    buffer_load_dwordx4 {vr(X + 8 + 4 * half, 4)}, {vr(idx, 2)}, {s}, 0 idxen offen offset:128{fl}")


def qreads(a):
    a(f"    v_xor_b32 v{V_QVA}, v{V_QVA}, v{V_COFF}")
    a(f"    v_xor_b32 v{V_QVB}, v{V_QVB}, v{V_COFF}")
    a(f"    ds_read_b128 {vr(V_Q + 0, 4)}, v{V_QVA} offset:{L_QT}")
    a(f"    ds_read_b128 {vr(V_Q + 4, 4)}, v{V_QVA} offset:{L_QT + 128}")
    a(f"    ds_read_b128 {vr(V_Q + 8, 4)}, v{V_QVB} offset:{L_QT}")
    a(f"    ds_read_b128 {vr(V_Q + 12, 4)}, v{V_QVB} offset:{L_QT + 128}")


def dots(a, X, lo, hi):
    for i in range(lo, hi):
        if OPT.get("nodots"):
            continue
        xa = X + (i if i < 4 else 8 + i - 4)
        xb = X + 4 + (i if i < 4 else 8 + i - 4)
        ca = "0" if i == 0 else f"v{V_PA}"
        cb = "0" if i == 0 else f"v{V_PB}"
        a(f"    v_dot2_f32_bf16 v{V_PA}, v{xa}, v{V_Q + i}, {ca}")
        a(f"    v_dot2_f32_bf16 v{V_PB}, v{xb}, v{V_Q + 8 + i}, {cb}")


def tail_patch(a, npairs_expr_sgpr):
    ia, ib = V_IDX[0]
    a(f"""
    v_lshrrev_b32 v{V_APX}, 3, v1
    s_sub_u32 s41, s40, 8
    s_cselect_b32 s41, 0, s41
    v_cmp_gt_u32 vcc, s40, v{V_APX}
    v_cmp_gt_u32 s[{S_EX}:{S_EX + 1}], s41, v{V_APX}
    s_nop 1
    v_cndmask_b32 v{ia}, v{V_PM}, v{ia}, vcc
    v_cndmask_b32_e64 v{ib}, v{V_PM}, v{ib}, s[{S_EX}:{S_EX + 1}]
""")


def step_early(a, s):
    X = V_X + 16 * s
    XN = V_X + 16 * (1 - s)
    ia, ib = V_IDX[0]
    pos = OPT["early"]
    a(f"""
K2_STEP{s}:
    s_waitcnt vmcnt(0) lgkmcnt(0)
""")

    def loads(tag):
        if OPT.get("tp"):
            a(f"""
    s_cmp_le_u32 s{S_REM}, 1
    s_cbranch_scc1 K2_LAST{s}
K2_LASTB{s}:
""")
        else:
            a(f"""
    s_cmp_eq_u32 s{S_REM}, 0
    s_cbranch_scc1 K2_SKIP{tag}{s}
""")
        xload(a, XN, ia, 0)
        xload(a, XN, ib, 1)
        a(f"""
    ds_read_u16 v{ia}, v{V_RA} offset:{(s + 2) * 64}
    ds_read_u16 v{ib}, v{V_RA} offset:{(s + 2) * 64 + 32}
K2_SKIP{tag}{s}:
""")

    if pos == 1:
        loads("A")
    dots(a, X, 0, 4)
    if pos == 2:
        loads("A")
    dots(a, X, 4, 8)
    if pos == 3:
        loads("A")
    a(f"""
    v_xor_b32 v{V_QVA}, v{V_QVA}, v{V_COFF}
    v_xor_b32 v{V_QVB}, v{V_QVB}, v{V_COFF}
    s_add_u32 s{S_PEND}, s{S_PEND}, 16
    v_permlane32_swap_b32 v{V_PA}, v{V_PB}
    ds_read_b128 {vr(V_Q + 0, 4)}, v{V_QVA} offset:{L_QT}
    ds_read_b128 {vr(V_Q + 4, 4)}, v{V_QVA} offset:{L_QT + 128}
    v_permlane16_swap_b32 v{V_PA}, v{V_PB}
    ds_read_b128 {vr(V_Q + 8, 4)}, v{V_QVB} offset:{L_QT}
    ds_read_b128 {vr(V_Q + 12, 4)}, v{V_QVB} offset:{L_QT + 128}
    v_add_f32_dpp v{V_T}, v{V_PA}, v{V_PA} row_shl:4 row_mask:0xf bank_mask:0x5
    v_add_f32_dpp v{V_T}, v{V_PB}, v{V_PB} row_shr:4 row_mask:0xf bank_mask:0xa
    ds_read_u16 v{V_QVA}, v{V_RA} offset:{(s + 2) * 64 + 2}
    ds_read_u16 v{V_QVB}, v{V_RA} offset:{(s + 2) * 64 + 34}
    v_add_f32_dpp v{V_T}, v{V_T}, v{V_T} quad_perm:[1,0,3,2] row_mask:0xf bank_mask:0xf
    s_nop 1
    v_add_f32_dpp v{V_T}, v{V_T}, v{V_T} quad_perm:[2,3,0,1] row_mask:0xf bank_mask:0xf
    v_exp_f32 v{V_T}, v{V_T}
    s_nop 0
    v_add_f32 v{V_T}, 1.0, v{V_T}
    v_rcp_f32 v{V_T}, v{V_T}
    s_cmp_le_u32 s{S_NEND}, s{S_PEND}
    v_cvt_pk_bf16_f32 v{V_AP}, v{V_T}, 0
    {"s_nop 0" if OPT.get("nobnd") else f"s_cbranch_scc1 K2_BND{s}"}
    s_nop 0
K2_RET{s}:
""")
    if not OPT.get("nopv"):
        a_setup(a, V_AP)
        a("    s_nop 1")
        smf(a, X)
    if pos == 4:
        loads("A")
    if s == 1:
        a(f"    v_add_u32 v{V_RA}, 128, v{V_RA}")
    a(f"""
    s_sub_u32 s{S_REM}, s{S_REM}, 1
    s_cbranch_scc1 K2_LOOP_END
""")
    if OPT.get("prio"):
        a(f"""
    s_cmp_eq_u32 s{S_REM}, s{S_THR}
    s_cbranch_scc1 K2_PRIO{s}
K2_PRIOB{s}:
""")


def step(a, s):
    if OPT.get("early"):
        return step_early(a, s)
    ns = OPT["ns"]
    X = V_X + 16 * s
    ia, ib = V_IDX[0]
    a(f"""
K2_STEP{s}:
    s_cmp_lt_u32 s{S_REM}, {ns - 1}
    s_cbranch_scc1 K2_TAIL{s}
    s_waitcnt vmcnt({4 * (ns - 1)}) lgkmcnt(2)
K2_BACK{s}:
""")
    dots(a, X, 0, 8)
    if OPT.get("fill"):
        a(f"""
    v_xor_b32 v{V_QVA}, v{V_QVA}, v{V_COFF}
    v_xor_b32 v{V_QVB}, v{V_QVB}, v{V_COFF}
    s_add_u32 s{S_PEND}, s{S_PEND}, 16
    v_permlane32_swap_b32 v{V_PA}, v{V_PB}
    ds_read_b128 {vr(V_Q + 0, 4)}, v{V_QVA} offset:{L_QT}
    ds_read_b128 {vr(V_Q + 4, 4)}, v{V_QVA} offset:{L_QT + 128}
    v_permlane16_swap_b32 v{V_PA}, v{V_PB}
    ds_read_b128 {vr(V_Q + 8, 4)}, v{V_QVB} offset:{L_QT}
    ds_read_b128 {vr(V_Q + 12, 4)}, v{V_QVB} offset:{L_QT + 128}
    v_add_f32_dpp v{V_T}, v{V_PA}, v{V_PA} row_shl:4 row_mask:0xf bank_mask:0x5
    v_add_f32_dpp v{V_T}, v{V_PB}, v{V_PB} row_shr:4 row_mask:0xf bank_mask:0xa
    ds_read_u16 v{V_QVA}, v{V_RA} offset:{(s + 2) * 64 + 2}
    ds_read_u16 v{V_QVB}, v{V_RA} offset:{(s + 2) * 64 + 34}
    v_add_f32_dpp v{V_T}, v{V_T}, v{V_T} quad_perm:[1,0,3,2] row_mask:0xf bank_mask:0xf
    s_nop 1
    v_add_f32_dpp v{V_T}, v{V_T}, v{V_T} quad_perm:[2,3,0,1] row_mask:0xf bank_mask:0xf
    v_exp_f32 v{V_T}, v{V_T}
    s_nop 0
    v_add_f32 v{V_T}, 1.0, v{V_T}""")
    else:
        qreads(a)
        a(f"""
    ds_read_u16 v{V_QVA}, v{V_RA} offset:{(s + 2) * 64 + 2}
    ds_read_u16 v{V_QVB}, v{V_RA} offset:{(s + 2) * 64 + 34}
    v_permlane32_swap_b32 v{V_PA}, v{V_PB}
    s_add_u32 s{S_PEND}, s{S_PEND}, 16
    s_nop 0
    v_permlane16_swap_b32 v{V_PA}, v{V_PB}
    s_nop 1
    v_add_f32_dpp v{V_T}, v{V_PA}, v{V_PA} row_shl:4 row_mask:0xf bank_mask:0x5
    v_add_f32_dpp v{V_T}, v{V_PB}, v{V_PB} row_shr:4 row_mask:0xf bank_mask:0xa
    s_nop 1
    v_add_f32_dpp v{V_T}, v{V_T}, v{V_T} quad_perm:[1,0,3,2] row_mask:0xf bank_mask:0xf
    s_nop 1
    v_add_f32_dpp v{V_T}, v{V_T}, v{V_T} quad_perm:[2,3,0,1] row_mask:0xf bank_mask:0xf
    v_exp_f32 v{V_T}, v{V_T}
    s_nop 0
    v_add_f32 v{V_T}, 1.0, v{V_T}""")
    a(f"""
    v_rcp_f32 v{V_T}, v{V_T}
    s_cmp_le_u32 s{S_NEND}, s{S_PEND}
    v_cvt_pk_bf16_f32 v{V_AP}, v{V_T}, 0
    {"s_nop 0" if OPT.get("nobnd") else f"s_cbranch_scc1 K2_BND{s}"}
    s_nop 0
K2_RET{s}:
""")
    if not OPT.get("nopv"):
        a_setup(a, V_AP)
        a("    s_nop 1")
        smf(a, X)
    a(f"""
    s_cmp_lt_u32 s{S_REM}, {ns}
    s_cbranch_scc1 K2_SKIP{s}
    s_waitcnt lgkmcnt(6)
""")
    xload(a, X, ia, 0)
    xload(a, X, ib, 1)
    a(f"""
    ds_read_u16 v{ia}, v{V_RA} offset:{(s + ns + 1) * 64}
    ds_read_u16 v{ib}, v{V_RA} offset:{(s + ns + 1) * 64 + 32}
K2_SKIP{s}:
""")
    if s == ns - 1:
        a(f"    v_add_u32 v{V_RA}, {ns * 64}, v{V_RA}")
    a(f"""
    s_sub_u32 s{S_REM}, s{S_REM}, 1
    s_cbranch_scc1 K2_LOOP_END
""")
    if OPT.get("prio"):
        a(f"""
    s_cmp_eq_u32 s{S_REM}, s{S_THR}
    s_cbranch_scc1 K2_PRIO{s}
K2_PRIOB{s}:
""")


def step_ool(a, s):
    X = V_X + 16 * s
    if not OPT.get("early"):
        a(f"K2_TAIL{s}:")
        for r in range(OPT["ns"] - 2, 0, -1):
            a(f"""
    s_cmp_eq_u32 s{S_REM}, {r}
    s_cbranch_scc0 K2_TAIL{s}_{r}
    s_waitcnt vmcnt({4 * r}) lgkmcnt(0)
    s_branch K2_BACK{s}
K2_TAIL{s}_{r}:
""")
        a(f"""
    s_waitcnt vmcnt(0) lgkmcnt(0)
    s_branch K2_BACK{s}
""")
    a(f"""
K2_BND{s}:
    s_sub_u32 s{S_SPLIT}, s{S_NEND}, s{S_PEND}
    s_add_u32 s{S_SPLIT}, s{S_SPLIT}, 16
    v_cmp_gt_u32 vcc, s{S_SPLIT}, v{V_P}
    s_mov_b32 s{S_SEL}, {s}
    s_nop 0
    v_cndmask_b32 v{V_APX}, 0, v{V_AP}, vcc
    v_cndmask_b32_e64 v{V_AP}, v{V_AP}, 0, vcc
    s_nop 1
""")
    a_setup(a, V_APX)
    a("    s_nop 1")
    smf(a, X)
    a("    s_branch K2_FLUSH")
    if OPT.get("tp") and OPT.get("early"):
        a(f"""
K2_LAST{s}:
    s_cmp_eq_u32 s{S_REM}, 0
    s_cbranch_scc1 K2_SKIPA{s}
    s_sub_u32 s40, s{S_E}, s{S_PEND}
    s_sub_u32 s40, s40, {16 if OPT["early"] < 3 or True else 0}
""")
        tail_patch(a, None)
        a(f"    s_branch K2_LASTB{s}")
    if OPT.get("prio"):
        a(f"""
K2_PRIO{s}:
    s_cmp_eq_u32 s{S_THR}, {PT[2] - 1}
    s_cbranch_scc0 K2_PRIO{s}_B
    s_setprio 2
    s_mov_b32 s{S_THR}, {PT[1] - 1}
    s_branch K2_PRIOB{s}
K2_PRIO{s}_B:
    s_cmp_eq_u32 s{S_THR}, {PT[1] - 1}
    s_cbranch_scc0 K2_PRIO{s}_C
    s_setprio 1
    s_mov_b32 s{S_THR}, {PT[0] - 1}
    s_branch K2_PRIOB{s}
K2_PRIO{s}_C:
    s_setprio 0
    s_mov_b32 s{S_THR}, -1
    s_branch K2_PRIOB{s}
""")


PARK_N = [0]


def park(a):
    n = PARK_N[0]
    PARK_N[0] += 1
    a(f"""
    s_cmp_lt_u32 s{S_W}, 8
    s_cbranch_scc1 K2_NOPARK{n}
    s_cmp_lg_u32 s{S_ROUND}, 0
    s_cbranch_scc1 K2_NOPARK{n}
    s_and_b32 s40, s{S_W}, 7
    s_lshl_b32 s40, s40, 12
    s_add_u32 s40, s40, {L_WV}
    v_lshlrev_b32 v{V_PA}, 4, v1
    v_add_u32 v{V_PA}, s40, v{V_PA}
""")
    for ks in range(4):
        a(f"    ds_write_b128 v{V_PA}, {vr(V_WV + 4 * ks, 4)} offset:{ks * 1024}")
    a(f"K2_NOPARK{n}:")


def gen_k2(a, opt):
    ws = f"s[{S_WS}:{S_WS + 3}]"
    a(f"""
.globl {MAIN}
.p2align 8
.type {MAIN},@function
{MAIN}:
    s_cmp_ge_u32 s2, 256
    s_cbranch_scc1 K2_END
    s_load_dwordx2 s[8:9], s[0:1], 56
    s_load_dwordx2 s[4:5], s[0:1], 0
    s_load_dwordx2 s[6:7], s[0:1], 40
""")
    stamp(a, opt, 0, real=True)
    stamp(a, opt, 1)
    a(f"""
    v_lshrrev_b32 v1, 6, v0
    s_and_b32 s{S_KEY}, s2, 7
    s_lshl_b32 s{S_KEY}, s{S_KEY}, 5
    v_readfirstlane_b32 s{S_W}, v1
    s_lshr_b32 s40, s2, 3
    s_add_u32 s{S_KEY}, s{S_KEY}, s40
    v_and_b32 v32, 0x3fc, v0
{"    v_lshlrev_b32 v32, 8, v32" if opt.get("tabp") else ""}
    s_lshl_b32 s42, s{S_KEY}, {2 if opt.get("tabp") else 10}
    s_add_u32 s42, s42, {hex(TAB_OFF)}
    s_lshl_b32 s41, s{S_KEY}, 8
    v_lshrrev_b32 v33, 4, v0
    v_and_b32 v34, 15, v0
    v_lshlrev_b32 v35, 16, v33
    v_lshl_or_b32 v35, v34, 4, v35
    v_add_u32 v{V_OOFF}, s41, v35
    s_waitcnt lgkmcnt(0)
""")
    srd(a, S_WS, 8, 9, WS_SIZE)
    a(f"    buffer_load_dword v37, v32, {ws}, s42 offen")
    srd(a, S_XR, 4, 5, N_NODES * 256)
    a(f"""
    buffer_load_dwordx4 v[40:43], v{V_OOFF}, s[{S_XR}:{S_XR + 3}], 0 offen
""")
    if opt.get("spf"):
        nl = opt["spf"]
        a(f"""
    s_cmp_lg_u32 s{S_W}, 15
    s_cbranch_scc1 K2_NOSPF
    s_and_b32 s40, s2, 7
    s_mul_i32 s40, s40, 782
    s_add_u32 s40, s40, {391 + 6400 - 64 * nl}
    s_and_b32 s40, s40, 0xffffff80
    s_max_u32 s40, s40, 6400
    s_sub_u32 s40, s40, 6400
    s_lshr_b32 s46, s2, 3
    s_mul_i32 s46, s46, {8 * REC_STRIDE}
    s_add_u32 s40, s40, s46
    v_and_b32 v38, 63, v0
    v_lshrrev_b32 v39, 3, v38
    v_mul_u32_u24 v39, {REC_STRIDE}, v39
    v_and_b32 v38, 7, v38
    v_lshl_add_u32 v39, v38, 7, v39
    buffer_load_dword v93, v39, {ws}, s40 offen
""")
        if nl == 16:
            a(f"    buffer_load_dword v92, v39, {ws}, s40 offen offset:1024")
        a("K2_NOSPF:")
    a(f"""
    v_and_b32 v1, 63, v0
    v_lshlrev_b32 v36, 4, v1
    s_lshl_b32 s45, s{S_W}, 12
    s_add_u32 s45, s45, {hex(WF_OFF)}
    s_cmp_ge_u32 s{S_W}, 8
    s_cbranch_scc1 K2_NOWQ
""")
    for ks in range(4):
        a(f"    buffer_load_dwordx4 {vr(V_X + 4 * ks, 4)}, v36, {ws}, s45 offen offset:{ks * 1024}")
    a(f"""
K2_NOWQ:
    v_lshrrev_b32 v38, 2, v0
    v_mul_u32_u24 v{V_SEG}, {REC_STRIDE}, v38
    v_and_b32 v44, 3, v0
    v_lshl_add_u32 v{V_SEG}, v44, 4, v{V_SEG}
    v_lshlrev_b32 v{V_REM}, 2, v44
    v_mov_b64 v[44:45], 0
    v_mov_b64 v[46:47], 0
    v_lshlrev_b32 v38, 4, v0
    ds_write_b128 v38, v[44:47] offset:{L_AGG}
    v_and_b32 v39, 127, v0
    v_lshlrev_b32 v39, 2, v39
    ds_write_b32 v39, v44
    v_and_b32 v38, 15, v33
    v_xor_b32 v38, v34, v38
    v_lshlrev_b32 v38, 4, v38
    v_lshl_or_b32 v{V_TADDR}, v33, 8, v38
    s_and_b32 s44, s{S_W}, 7
    v_and_b32 v32, 15, v1
    v_lshrrev_b32 v33, 4, v1
    s_lshl_b32 s49, s44, 1
    v_lshrrev_b32 v38, 1, v33
    v_add_u32 v38, s49, v38
    v_and_b32 v39, 1, v33
    v_lshlrev_b32 v39, 3, v39
    v_lshl_or_b32 v39, v32, 8, v39
    s_cmp_lt_u32 s{S_W}, 8
    s_cselect_b32 s49, 7, 15
    v_and_b32 v34, s49, v32
    v_xor_b32 v38, v38, v34
    v_lshl_or_b32 v{V_GADDR}, v38, 4, v39
    v_xor_b32 v38, v33, v32
    v_lshlrev_b32 v38, 4, v38
    v_lshl_or_b32 v{V_GA}, v32, 8, v38
    v_xor_b32 v{V_GA + 1}, 64, v{V_GA}
    v_xor_b32 v{V_GA + 2}, 0x80, v{V_GA}
    v_xor_b32 v{V_GA + 3}, 0xc0, v{V_GA}
    ; lane constants of the main loop
    v_and_b32 v{V_COFF}, 7, v1
    v_and_b32 v{V_SIDX}, 3, v1
    v_lshlrev_b32 v{V_COFF}, 4, v{V_COFF}
    v_mul_u32_u24 v{V_SIDX}, 0x1111, v{V_SIDX}
    v_mov_b32 v5, v{V_COFF}
    v_lshlrev_b32 v{V_P}, 2, v33
    v_bfe_u32 v39, v1, 2, 1
    v_lshl_add_u32 v{V_P}, v39, 1, v{V_P}
    v_bfe_u32 v39, v1, 3, 1
    v_add_u32 v{V_P}, v39, v{V_P}
    v_lshrrev_b32 v39, 5, v1
    v_lshl_or_b32 v{V_FK}, v39, 7, v{V_COFF}
    v_and_b32 v39, 1, v33
    v_lshl_or_b32 v{V_FK}, v39, 3, v{V_FK}
    v_lshrrev_b32 v{V_RA0}, 3, v1
    v_lshlrev_b32 v{V_RA0}, 2, v{V_RA0}
    v_add_u32 v{V_RA0}, {L_LIST}, v{V_RA0}
    v_mov_b64 {vr(V_A, 2)}, 0
    v_mov_b64 {vr(V_A + 2, 2)}, 0
""")
    srd(a, S_XI, 4, 5, N_NODES, stride=256)
    srd(a, S_OUT, 6, 7, N_NODES * 256)
    a(f"""
    s_mov_b32 s{S_ROUND}, 0
    s_mov_b32 s{S_VALID}, 0x00ff00ff
    s_mov_b32 s{S_VALID + 1}, 0x00ff00ff
    s_and_b32 s{S_V}, s{S_W}, 3
    s_lshl_b32 s{S_V}, s{S_V}, 2
    s_lshr_b32 s40, s{S_W}, 2
    s_add_u32 s{S_V}, s{S_V}, s40
    s_cmp_ge_u32 s{S_W}, 8
    s_cbranch_scc1 K2_TABB
    s_waitcnt vmcnt(5)
    s_branch K2_TABC
K2_TABB:
    s_waitcnt vmcnt({1 + (opt.get("spf", 0) // 8)})
{"    s_cmp_eq_u32 s10, 15" if opt.get("spf") else ""}
{"    s_cbranch_scc1 K2_TABC" if opt.get("spf") else ""}
{"    s_waitcnt vmcnt(1)" if opt.get("spf") else ""}
K2_TABC:
""")
    stamp(a, opt, 2)
    a(f"""
    v_and_b32 v38, 0xffff, v37
    v_lshrrev_b32 v37, 16, v37
    v_lshl_add_u32 v{V_SEG}, v38, 2, v{V_SEG}
    v_sub_u32 v{V_REM}, v37, v{V_REM}
""")
    seg_loads(a, "r0")
    a(f"""
    s_cmp_ge_u32 s{S_W}, 8
    s_cbranch_scc1 K2_XWB
    s_waitcnt vmcnt(5)
    s_branch K2_XWC
K2_XWB:
    s_waitcnt vmcnt({1 + (opt.get("spf", 0) // 8)})
{"    s_cmp_eq_u32 s10, 15" if opt.get("spf") else ""}
{"    s_cbranch_scc1 K2_XWC" if opt.get("spf") else ""}
{"    s_waitcnt vmcnt(1)" if opt.get("spf") else ""}
K2_XWC:
    ds_write_b128 v{V_TADDR}, v[40:43] offset:{L_XT}
""")
    seg_load_b(a, "r0")
    a(f"""
    s_waitcnt lgkmcnt(0)
    s_barrier
""")
    stamp(a, opt, 3)
    a(f"""
    s_cmp_ge_u32 s{S_W}, 8
    s_cbranch_scc1 K2_PF
""")
    B0 = V_X + 16
    QD = [V_D0, V_D1, 40, 44]
    BR = [B0, B0 + 16, B0 + 32, B0]

    def qreads_tile(tt):
        for ks in range(4):
            a(f"    ds_read_b128 {vr(BR[tt] + 4 * ks, 4)}, v{V_GA + ks} offset:{L_XT + tt * 4096}")

    def qmfma(tt):
        for ks in range(4):
            c = "0" if ks == 0 else vr(QD[tt], 4)
            a(f"    v_mfma_f32_16x16x32_bf16 {vr(QD[tt], 4)}, {vr(V_X + 4 * ks, 4)}, {vr(BR[tt] + 4 * ks, 4)}, {c}")

    for tt in range(3):
        qreads_tile(tt)
    a("    s_waitcnt vmcnt(1)")
    a(f"    s_mov_b32 s50, {hex(f32bits(QSCALE))}")
    a(f"    s_mov_b32 s51, s50")
    a("    s_waitcnt lgkmcnt(8)")
    qmfma(0)
    a("    s_waitcnt lgkmcnt(4)")
    qmfma(1)
    qreads_tile(3)
    a("    s_waitcnt lgkmcnt(4)")
    qmfma(2)
    a("    s_waitcnt lgkmcnt(0)")
    qmfma(3)
    for tt in range(4):
        if tt == 3:
            a("    s_nop 1")
        for i in range(2):
            a(f"    v_pk_mul_f32 {vr(QD[tt] + 2 * i, 2)}, {vr(QD[tt] + 2 * i, 2)}, s[50:51]")
        a(f"    v_cvt_pk_bf16_f32 v{80 + 2 * tt}, v{QD[tt]}, v{QD[tt] + 1}")
        a(f"    v_cvt_pk_bf16_f32 v{81 + 2 * tt}, v{QD[tt] + 2}, v{QD[tt] + 3}")
        a(f"    ds_write_b64 v{V_GADDR}, {vr(80 + 2 * tt, 2)} offset:{L_QT + tt * 4096}")
    npf = opt.get("pf2", 0)
    npi = (npf + 7) // 8
    a(f"""
    s_branch K2_PASS1
K2_PF:
""")
    for ks in range(4):
        a(f"    buffer_load_dwordx4 {vr(V_WV + 4 * ks, 4)}, v36, {ws}, s45 offen offset:{ks * 1024}")
    if npf:
        a(f"""
    s_lshr_b32 s40, s2, 3
    s_mul_i32 s40, s40, {782 * 128}
    s_sub_u32 s41, s{S_W}, 8
    s_lshl_b32 s46, s41, 13
    s_add_u32 s40, s40, s46
    s_add_u32 s40, s40, {opt.get("pf", 0) * 256 * 128}
    v_lshlrev_b32 v38, 7, v1
    v_add_u32 v38, s40, v38
""")
        for i in range(npi):
            a(f"""
    s_cmp_lt_u32 s41, {npf - 8 * i}
    s_cselect_b32 s46, 0, 0x40000000
    v_add_u32 v39, s46, v38
    buffer_load_dword v{95 - i}, v39, s[{S_XR}:{S_XR + 3}], 0 offen
""")
            if i + 1 < npi:
                a("    v_add_u32 v38, 0x10000, v38")
    AD, RK, BS = 64, 72, 80
    a(f"""
K2_PASS1:
    v_mov_b32 v{V_T}, 1
    v_lshlrev_b32 v{V_PA}, 2, v1
    v_mov_b32 v{V_APX}, {L_FLAG}
""")
    for pp in range(OPT["ns"] if (OPT["ns"] > 1 and not OPT.get("early")) else 0):
        a(f"    v_mov_b32 v{V_Q + 4 * pp + 1}, v{V_COFF}")
        a(f"    v_mov_b32 v{V_Q + 4 * pp + 3}, v{V_COFF}")
    a(f"""
    s_cmp_lt_u32 s{S_W}, 8
    s_cbranch_scc1 K2_SW_0
    s_cmp_lg_u32 s{S_ROUND}, 0
    s_cbranch_scc1 K2_SW_0
    s_waitcnt vmcnt({4 + npi})
    s_branch K2_SW_1
K2_SW_0:
    s_waitcnt vmcnt(0)
K2_SW_1:
""")
    stamp(a, opt, 4)
    for d in range(4):
        a(f"    v_cmp_lt_i32 s[{S_EX + 2 * d}:{S_EX + 2 * d + 1}], {d}, v{V_REM}")
    for d in range(4):
        a(f"    s_mov_b64 exec, s[{S_EX + 2 * d}:{S_EX + 2 * d + 1}]")
        a(f"    v_lshlrev_b32_sdwa v{AD + d}, 2, v{V_REC + d} dst_sel:DWORD dst_unused:UNUSED_PAD src0_sel:DWORD src1_sel:BYTE_3")
        a(f"    ds_add_rtn_u32 v{RK + d}, v{AD + d}, v{V_T}")
    a(f"""
    s_mov_b64 exec, -1
    s_cmp_eq_u32 s{S_HASB}, 0
    s_cbranch_scc1 K2_P1_NOB
""")
    for d in range(4):
        k = 4 + d
        a(f"    v_cmp_lt_i32 vcc, {16 + d}, v{V_REM}")
        a(f"    s_mov_b64 exec, vcc")
        a(f"    v_lshlrev_b32_sdwa v{AD + k}, 2, v{V_REC + k} dst_sel:DWORD dst_unused:UNUSED_PAD src0_sel:DWORD src1_sel:BYTE_3")
        a(f"    ds_add_rtn_u32 v{RK + k}, v{AD + k}, v{V_T}")
    a(f"""
    s_mov_b64 exec, -1
    v_cmp_lt_i32 vcc, 32, v{V_REM}
    s_cmp_eq_u64 vcc, 0
    s_cbranch_scc1 K2_P1_NOB
    s_mov_b64 exec, vcc
    ds_write_b32 v{V_APX}, v{V_T}
    s_mov_b64 exec, -1
K2_P1_NOB:
    s_waitcnt lgkmcnt(0)
    s_barrier
""")
    stamp(a, opt, 5)
    a(f"""
    ; per-node counts -> positions (lane = node): v_nend = inclusive sum, v_t = exclusive sum
    ds_read_b32 v{V_NEND}, v{V_PA}
    ds_read_b32 v{V_PB}, v{V_PA}
    ds_read_b32 v{V_APX}, v{V_APX}
    s_waitcnt lgkmcnt(0)
    v_readfirstlane_b32 s{S_MORE}, v{V_APX}
""")
    scan64(a, V_NEND)
    a(f"""
    s_nop 0
    v_readlane_b32 s{S_T}, v{V_NEND}, 63
    v_sub_u32 v{V_T}, v{V_NEND}, v{V_PB}
    v_add_u32 v{V_AP}, v{V_T}, v{V_NEND}
    v_cmp_lt_u32 s[{S_M}:{S_M + 1}], 0, v{V_PB}
""")
    for k in range(4):
        a(f"    ds_bpermute_b32 v{BS + k}, v{AD + k}, v{V_T}")
    a(f"""
    s_mul_i32 s40, s{S_V}, s{S_T}
    s_add_u32 s41, s40, s{S_T}
    s_add_u32 s40, s40, 7
    s_lshr_b32 s40, s40, 3
    s_add_u32 s41, s41, 7
    s_lshr_b32 s41, s41, 3
    v_cmp_le_u32 vcc, s40, v{V_AP}
    s_and_b64 s[{S_M}:{S_M + 1}], s[{S_M}:{S_M + 1}], vcc
    v_cmp_gt_u32 vcc, s41, v{V_AP}
    s_and_b64 s[{S_M}:{S_M + 1}], s[{S_M}:{S_M + 1}], vcc
    s_mov_b32 s{S_S}, 0
    s_mov_b32 s{S_REM}, 0
    s_cmp_eq_u64 s[{S_M}:{S_M + 1}], 0
    s_cbranch_scc1 K2_NOWORK_A
    s_ff1_i32_b64 s40, s[{S_M}:{S_M + 1}]
    s_flbit_i32_b64 s41, s[{S_M}:{S_M + 1}]
    s_sub_u32 s41, 63, s41
    v_readlane_b32 s{S_S}, v{V_T}, s40
    v_readlane_b32 s42, v{V_NEND}, s41
K2_NOWORK_A:
    s_waitcnt lgkmcnt(0)
""")
    for d in range(4):
        a(f"    s_mov_b64 exec, s[{S_EX + 2 * d}:{S_EX + 2 * d + 1}]")
        a(f"    v_add_lshl_u32 v{BS + d}, v{BS + d}, v{RK + d}, 2")
        a(f"    ds_write_b32 v{BS + d}, v{V_REC + d} offset:{L_LIST}")
    a(f"""
    s_mov_b64 exec, -1
    s_cmp_eq_u32 s{S_HASB}, 0
    s_cbranch_scc1 K2_P2_NOB
""")
    for k in range(4, 8):
        a(f"    ds_bpermute_b32 v{BS + k}, v{AD + k}, v{V_T}")
    a("    s_waitcnt lgkmcnt(0)")
    for d in range(4):
        k = 4 + d
        a(f"    v_cmp_lt_i32 vcc, {16 + d}, v{V_REM}")
        a(f"    s_mov_b64 exec, vcc")
        a(f"    v_add_lshl_u32 v{BS + k}, v{BS + k}, v{RK + k}, 2")
        a(f"    ds_write_b32 v{BS + k}, v{V_REC + k} offset:{L_LIST}")
    a(f"""
    s_mov_b64 exec, -1
K2_P2_NOB:
    s_cmp_eq_u64 s[{S_M}:{S_M + 1}], 0
    s_cbranch_scc1 K2_NOWORK_B
    s_sub_u32 s{S_REM}, s42, s{S_S}
    s_add_u32 s{S_REM}, s{S_REM}, 15
    s_lshr_b32 s{S_REM}, s{S_REM}, 4
    s_min_u32 s{S_REM}, s{S_REM}, 600
K2_NOWORK_B:
    s_lshl_b32 s40, s{S_S}, 2
    v_add_u32 v{V_RA}, s40, v{V_RA0}
    s_waitcnt lgkmcnt(0)
    s_barrier
""")
    stamp(a, opt, 6)
    if opt.get("diag"):
        a(f"    s_mov_b32 s{S_ST + 24}, s{S_REM}")
    a(f"""
    s_cmp_eq_u32 s{S_REM}, 0
    s_cbranch_scc1 K2_IDLE
""")
    ns = 1 if OPT.get("early") else OPT["ns"]
    PIDX = (lambda pp: (V_Q + 4 * pp, V_Q + 4 * pp + 2)) if ns > 1 else (lambda pp: V_IDX[0])
    for pp in range(ns):
        a(f"    ds_read_u16 v{PIDX(pp)[0]}, v{V_RA} offset:{pp * 64}")
        a(f"    ds_read_u16 v{PIDX(pp)[1]}, v{V_RA} offset:{pp * 64 + 32}")
    a(f"    ds_read_u16 v{V_QVA}, v{V_RA} offset:2")
    a(f"    ds_read_u16 v{V_QVB}, v{V_RA} offset:34")
    if OPT.get("tp"):
        a(f"""
    v_mov_b32 v{V_PM}, 0xffff
    s_cmp_eq_u32 s{S_REM}, 1
    s_cbranch_scc0 K2_PRO_FULL
    s_sub_u32 s40, s{S_E}, s{S_S}
    s_waitcnt lgkmcnt(2)
""")
        tail_patch(a, None)
        a("K2_PRO_FULL:")
    if OPT.get("prio"):
        a("    s_setprio 3")
    if ns == 4:
        park(a)
    for pp in range(ns):
        if pp > 0:
            a(f"    s_cmp_le_u32 s{S_REM}, {pp}")
            a(f"    s_cbranch_scc1 K2_PRO_DONE")
        a(f"    s_waitcnt lgkmcnt({min(15, 2 * (ns - pp))})" if ns < 4 else ("    s_waitcnt lgkmcnt(0)" if pp == 0 else ""))
        xload(a, V_X + 16 * pp, PIDX(pp)[0], 0)
        xload(a, V_X + 16 * pp, PIDX(pp)[1], 1)
        if OPT.get("prio") and pp < 2:
            a(f"    s_setprio {max(0, 1 - pp)}")
    a(f"""
K2_PRO_DONE:
    s_waitcnt lgkmcnt(0)
""")
    qreads(a)
    a(f"""
    ds_read_u16 v{V_QVA}, v{V_RA} offset:{64 + 2}
    ds_read_u16 v{V_QVB}, v{V_RA} offset:{64 + 34}
    ds_read_u16 v{V_IDX[0][0]}, v{V_RA} offset:{ns * 64}
    ds_read_u16 v{V_IDX[0][1]}, v{V_RA} offset:{ns * 64 + 32}
    s_sub_u32 s{S_REM}, s{S_REM}, 1
    s_mov_b32 s{S_PEND}, s{S_S}
    s_mov_b32 s{S_SEL}, {OPT["ns"]}
""")
    if OPT.get("prio"):
        a(f"""
    s_mov_b32 s{S_THR}, -1
    s_setprio 0
    s_cmp_lt_u32 s{S_REM}, {PT[0]}
    s_cbranch_scc1 K2_PRIO_SET
    s_mov_b32 s{S_THR}, {PT[0] - 1}
    s_setprio 1
    s_cmp_lt_u32 s{S_REM}, {PT[1]}
    s_cbranch_scc1 K2_PRIO_SET
    s_mov_b32 s{S_THR}, {PT[1] - 1}
    s_setprio 2
    s_cmp_lt_u32 s{S_REM}, {PT[2]}
    s_cbranch_scc1 K2_PRIO_SET
    s_mov_b32 s{S_THR}, {PT[2] - 1}
    s_setprio 3
K2_PRIO_SET:
""")
    a(f"""
    s_branch K2_NEXTNODE
K2_LOOP:
""")
    NS = OPT["ns"]
    for s in range(NS):
        step(a, s)
    a("    s_branch K2_STEP0")
    for s in range(NS):
        step_ool(a, s)
    a("K2_IDLE:")
    if NS == 4:
        park(a)
    a("    s_branch K2_LOOP_END")

    T0 = V_REC
    a(f"""
K2_FLUSH:
    s_lshl_b32 s{S_T}, s{S_NODE}, 8
    s_add_u32 s{S_T}, s{S_T}, {L_AGG}
    s_and_b32 s40, s{S_NODE}, 15
    s_lshl_b32 s40, s40, 4
    s_or_b32 s{S_T}, s{S_T}, s40
    v_xor_b32 v{V_APX}, s{S_T}, v{V_FK}
    s_nop 3
""")
    for i in range(4):
        a(f"    v_permlane32_swap_b32 v{V_D0 + i}, v{V_D1 + i}")
    for i in range(4):
        a(f"    v_add_f32_dpp v{V_D0 + i}, v{V_D1 + i}, v{V_D0 + i} row_shl:8 row_mask:0xf bank_mask:0x3")
    a(f"""
    s_cmp_lg_u32 s{S_ROUND}, 0
    s_cbranch_scc1 K2_FLUSH_RMW
K2_FLUSH_PACK:
    v_cvt_pk_bf16_f32 v{T0 + 0}, v{V_D0 + 0}, v{V_D0 + 1}
    v_cvt_pk_bf16_f32 v{T0 + 1}, v{V_D0 + 2}, v{V_D0 + 3}
    s_mov_b64 exec, s[{S_VALID}:{S_VALID + 1}]
    ds_write_b64 v{V_APX}, {vr(T0, 2)}
    s_mov_b64 exec, -1
K2_NEXTNODE:
    s_mov_b32 s{S_NEND}, -1
    s_cmp_eq_u64 s[{S_M}:{S_M + 1}], 0
    s_cbranch_scc1 K2_FLUSH_RET
    s_ff1_i32_b64 s{S_NODE}, s[{S_M}:{S_M + 1}]
    s_bitset0_b64 s[{S_M}:{S_M + 1}], s{S_NODE}
    v_readlane_b32 s{S_NEND}, v{V_NEND}, s{S_NODE}
""")
    for i in range(4):
        a(f"    v_mov_b64 {vr(V_D0 + 2 * i, 2)}, 0")
    a(f"""
    s_cmp_le_u32 s{S_NEND}, s{S_PEND}
    s_cbranch_scc1 K2_FLUSH_AGAIN
K2_FLUSH_RET:
""")
    for s in range(NS):
        a(f"    s_cmp_eq_u32 s{S_SEL}, {s}")
        a(f"    s_cbranch_scc1 K2_RET{s}")
    a("    s_branch K2_LOOP")
    a("K2_FLUSH_AGAIN:")
    for s in range(NS - 1):
        a(f"    s_cmp_eq_u32 s{S_SEL}, {s}")
        a(f"    s_cbranch_scc1 K2_BND{s}")
    a(f"    s_branch K2_BND{NS - 1}")
    a(f"""
K2_FLUSH_RMW:
    ds_read_b64 {vr(T0, 2)}, v{V_APX}
    s_waitcnt lgkmcnt(0)
    v_lshlrev_b32 v{T0 + 2}, 16, v{T0}
    v_and_b32 v{T0 + 3}, 0xffff0000, v{T0}
    v_add_f32 v{V_D0 + 0}, v{V_D0 + 0}, v{T0 + 2}
    v_add_f32 v{V_D0 + 1}, v{V_D0 + 1}, v{T0 + 3}
    v_lshlrev_b32 v{T0 + 2}, 16, v{T0 + 1}
    v_and_b32 v{T0 + 3}, 0xffff0000, v{T0 + 1}
    v_add_f32 v{V_D0 + 2}, v{V_D0 + 2}, v{T0 + 2}
    v_add_f32 v{V_D0 + 3}, v{V_D0 + 3}, v{T0 + 3}
    s_branch K2_FLUSH_PACK

K2_LOOP_END:
""")
    if OPT.get("prio"):
        a("    s_setprio 0")
    a(f"""
    s_cmp_lg_u32 s{S_MORE}, 0
    s_cbranch_scc1 K2_MORE
""")
    if NS == 4:
        a(f"""
    s_cmp_lt_u32 s{S_W}, 8
    s_cbranch_scc1 K2_NOFETCH
    s_and_b32 s40, s{S_W}, 7
    s_lshl_b32 s40, s40, 12
    s_add_u32 s40, s40, {L_WV}
    v_lshlrev_b32 v{V_PA}, 4, v1
    v_add_u32 v{V_PA}, s40, v{V_PA}
""")
        for ks in range(4):
            a(f"    ds_read_b128 {vr(V_WV + 4 * ks, 4)}, v{V_PA} offset:{ks * 1024}")
    a(f"""
K2_NOFETCH:
    s_waitcnt vmcnt(0) lgkmcnt(0)
""")
    stamp(a, opt, 7)
    a(f"""
    s_barrier
""")
    stamp(a, opt, 8)
    a(f"""
    s_cmp_lt_u32 s{S_W}, 8
    s_cbranch_scc1 K2_EPI_WAIT
""")
    EB = V_Q
    ED = [V_D0, V_D1, V_REC, V_REC + 4]
    for tt in range(4):
        for ks in range(4):
            a(f"    ds_read_b128 {vr(EB + (tt * 4 + ks) * 4, 4)}, v{V_GA + ks} offset:{L_AGG + tt * 4096}")
    for tt in range(4):
        a(f"    s_waitcnt lgkmcnt({4 * (3 - tt)})")
        for ks in range(4):
            c = "0" if ks == 0 else vr(ED[tt], 4)
            a(f"    v_mfma_f32_16x16x32_bf16 {vr(ED[tt], 4)}, {vr(V_WV + 4 * ks, 4)}, {vr(EB + (tt * 4 + ks) * 4, 4)}, {c}")
    a("    s_nop 3")
    for tt in range(4):
        if tt == 3:
            a("    s_nop 3")
        a(f"    v_cvt_pk_bf16_f32 v{16 + 2 * tt}, v{ED[tt]}, v{ED[tt] + 1}")
        a(f"    v_cvt_pk_bf16_f32 v{17 + 2 * tt}, v{ED[tt] + 2}, v{ED[tt] + 3}")
        a(f"    ds_write_b64 v{V_GADDR}, {vr(16 + 2 * tt, 2)} offset:{L_XT + tt * 4096}")
    a(f"""
K2_EPI_WAIT:
    s_waitcnt lgkmcnt(0)
    s_barrier
    ds_read_b128 v[40:43], v{V_TADDR} offset:{L_XT}
    s_waitcnt lgkmcnt(0)
    buffer_store_dwordx4 v[40:43], v{V_OOFF}, s[{S_OUT}:{S_OUT + 3}], 0 offen{FL[opt.get("ost", 2)]}
""")
    stamp(a, opt, 9)
    if opt.get("diag"):
        a("    s_waitcnt vmcnt(0)")
    stamp(a, opt, 10)
    stamp(a, opt, 11, real=True)
    dump_stamps(a, opt, 13, 8, 9, NW, DIAG_OFF + 0x100000)
    a(f"""
    s_endpgm

K2_MORE:
    s_waitcnt vmcnt(0) lgkmcnt(0)
    s_barrier
    s_add_u32 s{S_ROUND}, s{S_ROUND}, 1
    v_and_b32 v39, 127, v0
    v_lshlrev_b32 v39, 2, v39
    v_mov_b32 v38, 0
    ds_write_b32 v39, v38
    v_add_u32 v{V_SEG}, 128, v{V_SEG}
    v_subrev_u32 v{V_REM}, 32, v{V_REM}
""")
    seg_loads(a, "rn")
    seg_load_b(a, "rn")
    a(f"""
    s_waitcnt lgkmcnt(0)
    s_barrier
    s_branch K2_PASS1
K2_END:
    s_endpgm
""")


HEADER = f"""; Kernarg layout for this problem (64 bytes, ptrs only, base s[0:1]):
; Launch 1 buckets the edges by (dst & 255) and transposes the weights into d_ws.
; Launch 2 owns 49 destination nodes per workgroup and produces the output rows.
; @launch kernel={K1} grid=(272,1,1) block=(256,1,1) lds=8320
; @launch kernel={MAIN} grid=(256,1,1) block=({NW * 64},1,1) lds=@LDS@
.amdgcn_target "amdgcn-amd-amdhsa--gfx950"
.text
"""


def kd(name, vgpr, sgpr):
    acc = (vgpr + 3) // 4 * 4
    return f"""
.p2align 6
.amdhsa_kernel {name}
  .amdhsa_next_free_vgpr {vgpr}
  .amdhsa_next_free_sgpr {sgpr}
  .amdhsa_accum_offset {acc}
  .amdhsa_group_segment_fixed_size 0
  .amdhsa_kernarg_size 64
  .amdhsa_user_sgpr_count 2
  .amdhsa_user_sgpr_kernarg_segment_ptr 1
  .amdhsa_system_sgpr_workgroup_id_x 1
  .amdhsa_float_denorm_mode_32 3
.end_amdhsa_kernel
"""


def generate(opt=None):
    opt = opt or {}
    OPT.clear()
    OPT.update(opt)
    OPT.setdefault("early", 3)
    OPT.setdefault("tp", 0)
    OPT.setdefault("ns", 2 if OPT.get("early") else 1)
    OPT.setdefault("prio", 1)
    OPT.setdefault("pf2", 5)
    OPT.setdefault("k1w", 1)
    opt = dict(OPT)
    PARK_N[0] = 0
    if "pt" in opt:
        v = opt["pt"]
        PT[:] = [v // 100, (v // 10) % 10, v % 10]
    a = Asm()
    hdr = HEADER.replace("@LDS@", str(L_END if OPT["ns"] == 4 else L_WV))
    if opt.get("k1w"):
        hdr = hdr.replace("grid=(272,1,1) block=(256,1,1) lds=8320", "grid=(272,1,1) block=(448,1,1) lds=9216")
    a(hdr)
    (gen_k1_wide if opt.get("k1w") else gen_k1)(a, opt)
    gen_k2(a, opt)
    a('.section .rodata,"a"')
    sg = 96 if opt.get("diag") else 64
    a(kd(K1, 80, sg))
    a(kd(MAIN, 128, sg))
    return a.text()


if __name__ == "__main__":
    out = sys.argv[1] if len(sys.argv) > 1 else "gather_scatter__kernel_systems_refs_featgraph__graph.s"
    opt = {}
    for kv in sys.argv[2:]:
        k, _, v = kv.partition("=")
        opt[k] = int(v) if v else 1
    open(out, "w").write(generate(opt))
    print("wrote", out)
```

```python
import math
import sys

OPT = {}
FL = ["", " sc1", " nt", " sc0 sc1", " sc0 sc1 nt"]
MAIN = "gather_scatter__kernel_systems_refs_featgraph__graph_kernel"
K1 = "gs_bucket_kernel"

N_NODES = 12500
N_EDGES = 400000
CHUNK = 1564
REC_STRIDE = 6400
REC_OFF = 0
TAB_OFF = 0x190000
WF_OFF = 0x1D0000
WS_SIZE = 0x1E0000

L_CNT = 0
L_FLAG = 256
L_AGG = 1024
L_QT = 17408
L_XT = 33792
L_LIST = 50176
L_WV = 84224
L_END = 116992

NW = 16
P = 3

QSCALE = -math.log2(math.e) / math.sqrt(128.0)


def f32bits(x):
    import struct
    return struct.unpack("<I", struct.pack("<f", x))[0]


class Asm:
    def __init__(self):
        self.lines = []

    def __call__(self, text=""):
        for ln in text.strip("\n").split("\n"):
            self.lines.append(ln.rstrip())

    def text(self):
        return "\n".join(self.lines) + "\n"


def vr(a, n):
    return f"v[{a}:{a + n - 1}]"


def srd(a, dst, lo, hi, nrec, stride=0):
    a(f"    s_mov_b32 s{dst}, s{lo}")
    a(f"    s_and_b32 s{dst + 1}, s{hi}, 0xffff")
    if stride:
        a(f"    s_or_b32 s{dst + 1}, s{dst + 1}, {hex(stride << 16)}")
    a(f"    s_mov_b32 s{dst + 2}, {hex(nrec)}")
    a(f"    s_mov_b32 s{dst + 3}, 0x20000")


DIAG_OFF = 0x400000
S_ST = 60


def stamp(a, opt, i, real=False):
    if not opt.get("diag"):
        return
    op = "s_memrealtime" if real else "s_memtime"
    a(f"    {op} s[{S_ST + 2 * i}:{S_ST + 2 * i + 1}]")
    a("    s_waitcnt lgkmcnt(0)")


def dump_stamps(a, opt, n, ptr_lo, ptr_hi, waves_per_wg, base):
    if not opt.get("diag"):
        return
    a(f"    s_mov_b32 s52, s{ptr_lo}")
    a(f"    s_and_b32 s53, s{ptr_hi}, 0xffff")
    a(f"    s_mov_b32 s54, 0x1000000")
    a(f"    s_mov_b32 s55, 0x20000")
    a(f"    v_mov_b32 v2, 0")
    for i in range(n):
        a(f"    v_writelane_b32 v2, s{S_ST + 2 * i}, {i}")
    a(f"    v_lshrrev_b32 v3, 6, v0")
    a(f"    s_mul_i32 s56, s2, {waves_per_wg}")
    a(f"    v_add_u32 v3, s56, v3")
    a(f"    v_lshlrev_b32 v3, 6, v3")
    a(f"    v_and_b32 v4, 63, v0")
    a(f"    v_lshl_add_u32 v3, v4, 2, v3")
    a(f"    v_add_u32 v3, {hex(base)}, v3")
    a(f"    s_mov_b64 exec, 0xffff")
    a(f"    buffer_store_dword v2, v3, s[52:55], 0 offen")
    a(f"    s_mov_b64 exec, -1")


def scan64(a, reg):
    for ctl in ("row_shr:1", "row_shr:2", "row_shr:4", "row_shr:8"):
        a(f"    s_nop 1")
        a(f"    v_add_u32_dpp v{reg}, v{reg}, v{reg} {ctl} row_mask:0xf bank_mask:0xf bound_ctrl:1")
    a(f"    s_nop 1")
    a(f"    v_add_u32_dpp v{reg}, v{reg}, v{reg} row_bcast:15 row_mask:0xa bank_mask:0xf")
    a(f"    s_nop 1")
    a(f"    v_add_u32_dpp v{reg}, v{reg}, v{reg} row_bcast:31 row_mask:0xc bank_mask:0xf")


def k1_prefetch(a, opt, where):
    if opt.get("pfpos", 0) != where:
        return
    n = opt.get("pf", 0)
    if n:
        srd(a, 40, 34, 35, N_NODES * 256)
        a(f"""
    s_lshr_b32 s38, s2, 3
    s_mul_i32 s38, s38, {782 * 128}
    v_lshlrev_b32 v64, 7, v0
    v_add_u32 v64, s38, v64
""")
        for i in range(n):
            if i:
                a(f"    v_add_u32 v64, 0x8000, v64")
            if i == 3:
                a(f"    v_cmp_gt_u32 vcc, {782 - 768}, v0")
                a(f"    s_mov_b64 exec, vcc")
                a(f"    s_cbranch_execz K1_PF_DONE")
            a(f"    buffer_load_dword v{65 + i}, v64, s[40:43], 0 offen")
        if n > 3:
            a("K1_PF_DONE:")
            a("    s_mov_b64 exec, -1")
    if opt.get("pfm"):
        srd(a, 40, 34, 35, N_NODES * 256)
        a(f"""
    s_mul_i32 s38, s2, {98 * 128}
    v_lshlrev_b32 v64, 7, v0
    v_add_u32 v64, s38, v64
    v_mov_b32 v66, 0x7ffffff0
    v_cmp_gt_u32 vcc, 98, v0
    s_nop 1
    v_cndmask_b32 v64, v66, v64, vcc
    buffer_load_dword v65, v64, s[40:43], 0 offen
""")
    if opt.get("codepf"):
        a(f"""
    s_getpc_b64 s[44:45]
K1_PC:
    s_add_u32 s44, s44, {MAIN}-K1_PC
    s_addc_u32 s45, s45, 0
    v_and_b32 v70, 63, v0
    v_lshlrev_b32 v70, 7, v70
    v_min_u32 v70, K2_END-{MAIN}, v70
    global_load_dword v71, v70, s[44:45]
""")
    if opt.get("touch"):
        srd(a, 40, 36, 37, N_NODES * 256)
        a(f"""
    v_and_b32 v72, 1, v0
    v_lshlrev_b32 v72, 21, v72
    buffer_load_dword v73, v72, s[40:43], 0 offen
""")
        srd(a, 40, 34, 35, N_NODES * 256)
        a(f"""
    buffer_load_dword v74, v72, s[40:43], 0 offen
""")

def gen_k1(a, opt):
    a(f"""
.globl {K1}
.p2align 8
.type {K1},@function
{K1}:
    s_cmp_ge_u32 s2, 272
    s_cbranch_scc1 K1_END
    s_load_dwordx4 s[4:7], s[0:1], 8
    s_load_dwordx4 s[8:11], s[0:1], 24
    s_load_dwordx2 s[12:13], s[0:1], 56
    s_load_dwordx2 s[34:35], s[0:1], 0
    s_load_dwordx2 s[36:37], s[0:1], 40
    s_cmp_ge_u32 s2, 256
    s_cbranch_scc1 K1_WPREP
""")
    stamp(a, opt, 0, real=True)
    stamp(a, opt, 1)
    a(f"""
    v_lshlrev_b32 v1, 2, v0
    v_mov_b32 v2, 0
    ds_write_b32 v1, v2
    s_mul_i32 s14, s2, {CHUNK * 4}
    v_lshlrev_b32 v3, 4, v0
    v_add_u32 v4, s14, v3
    v_add_u32 v5, 0x1000, v4
    s_movk_i32 s15, {(CHUNK - 1024) // 4}
    s_cmp_eq_u32 s2, 255
    s_cselect_b32 s15, {(N_EDGES - 255 * CHUNK - 1024) // 4}, s15
    s_and_b32 s28, s2, 7
    s_lshl_b32 s28, s28, 5
    s_lshr_b32 s29, s2, 3
    s_add_u32 s28, s28, s29
    v_mov_b32 v6, 1
    v_cmp_gt_u32 vcc, s15, v0
    s_mov_b64 s[32:33], vcc
    s_waitcnt lgkmcnt(0)
""")
    srd(a, 16, 4, 5, N_EDGES * 4)
    srd(a, 20, 6, 7, N_EDGES * 4)
    srd(a, 24, 12, 13, WS_SIZE)
    a(f"""
    buffer_load_dwordx4 v[8:11], v4, s[20:23], 0 offen
    buffer_load_dwordx4 v[12:15], v4, s[16:19], 0 offen
    s_mov_b64 exec, s[32:33]
    s_cbranch_execz K1_A
    buffer_load_dwordx4 v[16:19], v5, s[20:23], 0 offen
    buffer_load_dwordx4 v[20:23], v5, s[16:19], 0 offen
K1_A:
    s_mov_b64 exec, -1
""")
    npf0 = 0
    if opt.get("pfpos", 0) == 0:
        npf0 = opt.get("pf", 0) + (1 if opt.get("codepf") else 0) + (2 if opt.get("touch") else 0) + (1 if opt.get("pfm") else 0)
    k1_prefetch(a, opt, 0)
    if npf0 and opt.get("pf", 0) > 3:
        npf0 -= 1
    a(f"""
    s_barrier
    s_waitcnt vmcnt({npf0})
""")
    k1_prefetch(a, opt, 1)
    stamp(a, opt, 2)

    def edges(dbase, sbase, abase, rbase):
        for e in range(4):
            a(f"    v_lshlrev_b32_sdwa v{abase + e}, 2, v{dbase + e} dst_sel:DWORD dst_unused:UNUSED_PAD src0_sel:DWORD src1_sel:BYTE_0")
            a(f"    ds_add_rtn_u32 v{rbase + e}, v{abase + e}, v6")
        for e in range(4):
            a(f"    v_lshrrev_b32 v7, 8, v{dbase + e}")
            a(f"    v_lshl_or_b32 v{sbase + e}, v7, 24, v{sbase + e}")
            a(f"    v_and_b32 v7, 7, v7")
            a(f"    v_lshl_or_b32 v{sbase + e}, v7, 20, v{sbase + e}")

    edges(8, 12, 24, 32)
    a("""
    s_mov_b64 exec, s[32:33]
    s_cbranch_execz K1_B
""")
    edges(16, 20, 28, 36)
    a("""
K1_B:
    s_mov_b64 exec, -1
    s_waitcnt lgkmcnt(0)
    s_barrier
""")
    stamp(a, opt, 3)
    a("""
    v_and_b32 v48, 63, v0
    v_lshlrev_b32 v48, 4, v48
    ds_read_b128 v[52:55], v48
    ds_read_b32 v56, v1
    s_waitcnt lgkmcnt(0)
    v_add_u32 v49, v52, v53
    v_add_u32 v50, v49, v54
    v_add_u32 v51, v50, v55
    v_mov_b32 v57, v51
""")
    scan64(a, 57)
    a(f"""
    v_sub_u32 v58, v57, v51
    v_add_u32 v59, v58, v52
    v_add_u32 v60, v58, v49
    v_add_u32 v61, v58, v50
    ds_write_b128 v48, v[58:61] offset:1024
""")
    for e in range(4):
        a(f"    ds_read_b32 v{40 + e}, v{24 + e} offset:1024")
    a("    ds_read_b32 v62, v1 offset:1024")
    a("""
    s_mov_b64 exec, s[32:33]
    s_cbranch_execz K1_C
""")
    for e in range(4):
        a(f"    ds_read_b32 v{44 + e}, v{28 + e} offset:1024")
    a("    s_waitcnt lgkmcnt(0)")
    for e in range(4):
        a(f"    v_add_lshl_u32 v{44 + e}, v{44 + e}, v{36 + e}, 2")
        a(f"    ds_write_b32 v{44 + e}, v{20 + e} offset:2048")
    a("""
K1_C:
    s_mov_b64 exec, -1
    s_waitcnt lgkmcnt(0)
""")
    for e in range(4):
        a(f"    v_add_lshl_u32 v{40 + e}, v{40 + e}, v{32 + e}, 2")
        a(f"    ds_write_b32 v{40 + e}, v{12 + e} offset:2048")
    a(f"""
    v_lshl_or_b32 v62, v56, 16, v62
    v_lshlrev_b32 v63, 10, v0
    s_lshl_b32 s29, s28, 2
    s_add_u32 s29, s29, {hex(TAB_OFF)}
    buffer_store_dword v62, v63, s[24:27], s29 offen
    s_mul_i32 s30, s28, {REC_STRIDE}
    v_add_u32 v5, 0x1000, v3
    s_waitcnt lgkmcnt(0)
    s_barrier
    ds_read_b128 v[8:11], v3 offset:2048
    s_mov_b64 exec, s[32:33]
    s_cbranch_execz K1_D
    ds_read_b128 v[12:15], v3 offset:6144
    s_waitcnt lgkmcnt(0)
    buffer_store_dwordx4 v[12:15], v5, s[24:27], s30 offen{FL[opt.get("rst", 0)]}
K1_D:
    s_mov_b64 exec, -1
    s_waitcnt lgkmcnt(0)
    buffer_store_dwordx4 v[8:11], v3, s[24:27], s30 offen{FL[opt.get("rst", 0)]}
""")
    stamp(a, opt, 4)
    if opt.get("diag"):
        a("    s_waitcnt vmcnt(0)")
    stamp(a, opt, 5)
    stamp(a, opt, 6, real=True)
    dump_stamps(a, opt, 7, 12, 13, 4, DIAG_OFF)
    a(f"""
    s_endpgm

K1_WPREP:
    s_sub_u32 s14, s2, 256
    s_lshr_b32 s15, s14, 3
    s_and_b32 s28, s14, 7
    v_and_b32 v1, 15, v0
    v_bfe_u32 v2, v0, 4, 2
    v_lshrrev_b32 v3, 6, v0
    v_lshlrev_b32 v3, 13, v3
    v_lshl_add_u32 v3, v2, 11, v3
    v_lshl_add_u32 v3, v1, 1, v3
    s_lshl_b32 s29, s28, 5
    v_add_u32 v3, s29, v3
    v_lshlrev_b32 v4, 4, v0
    s_lshl_b32 s30, s14, 12
    s_add_u32 s30, s30, {hex(WF_OFF)}
    s_cmp_eq_u32 s15, 0
    s_waitcnt lgkmcnt(0)
    s_cselect_b32 s16, s8, s10
    s_cselect_b32 s17, s9, s11
    s_and_b32 s17, s17, 0xffff
    s_mov_b32 s18, 0x8000
    s_mov_b32 s19, 0x20000
""")
    srd(a, 24, 12, 13, WS_SIZE)
    for j in range(8):
        a(f"    buffer_load_ushort v{8 + j}, v3, s[16:19], 0 offen offset:{j * 256}")
    a("    s_waitcnt vmcnt(0)")
    for j in range(4):
        a(f"    v_lshl_or_b32 v{16 + j}, v{9 + 2 * j}, 16, v{8 + 2 * j}")
    a(f"""
    buffer_store_dwordx4 v[16:19], v4, s[24:27], s30 offen
K1_END:
    s_endpgm
""")


def gen_k1_wide(a, opt):
    a(f"""
.globl {K1}
.p2align 8
.type {K1},@function
{K1}:
    s_cmp_ge_u32 s2, 272
    s_cbranch_scc1 K1_END
    s_load_dwordx4 s[4:7], s[0:1], 8
    s_load_dwordx2 s[12:13], s[0:1], 56
    s_load_dwordx4 s[8:11], s[0:1], 24
""")
    if opt.get("wfirst"):
        a("""
    ; the first sixteen workgroups transpose the weights, the others sort one chunk each
    s_cmp_lt_u32 s2, 16
    s_cselect_b32 s14, 272, 0
    s_add_u32 s2, s2, s14
    s_sub_u32 s2, s2, 16
""")
    a(f"""
    s_cmp_ge_u32 s2, 256
    s_cbranch_scc1 K1_WPREP
""")
    stamp(a, opt, 0, real=True)
    stamp(a, opt, 1)
    a(f"""
    s_mul_i32 s14, s2, {CHUNK * 4}
    v_lshlrev_b32 v3, 4, v0
    v_add_u32 v4, s14, v3
    s_movk_i32 s15, {CHUNK // 4}
    s_cmp_eq_u32 s2, 255
    s_cselect_b32 s15, {(N_EDGES - 255 * CHUNK) // 4}, s15
    v_cmp_gt_u32 vcc, s15, v0
    s_mov_b64 s[32:33], vcc
    v_mov_b32 v7, 0x7ffffff0
    v_cndmask_b32 v4, v7, v4, vcc
    s_waitcnt lgkmcnt(0)
""")
    srd(a, 20, 6, 7, N_EDGES * 4)
    a("    buffer_load_dwordx4 v[8:11], v4, s[20:23], 0 offen")
    srd(a, 16, 4, 5, N_EDGES * 4)
    a("    buffer_load_dwordx4 v[12:15], v4, s[16:19], 0 offen")
    srd(a, 24, 12, 13, WS_SIZE)
    a(f"""
    v_and_b32 v1, 255, v0
    v_lshlrev_b32 v1, 2, v1
    v_mov_b32 v2, 0
    ds_write_b32 v1, v2
    s_and_b32 s28, s2, 7
    s_lshl_b32 s28, s28, 5
    s_lshr_b32 s29, s2, 3
    s_add_u32 s28, s28, s29
    v_mov_b32 v6, 1
    v_and_b32 v48, 63, v0
    v_lshlrev_b32 v48, 4, v48
    v_lshlrev_b32 v63, {2 if opt.get("tabp") else 10}, v0
    s_lshl_b32 s29, s28, {10 if opt.get("tabp") else 2}
    s_add_u32 s29, s29, {hex(TAB_OFF)}
    s_mul_i32 s30, s28, {REC_STRIDE}
    s_waitcnt lgkmcnt(0)
    s_barrier
    s_waitcnt vmcnt(0)
""")
    stamp(a, opt, 2)
    a("    s_mov_b64 exec, s[32:33]")
    for e in range(4):
        a(f"    v_lshlrev_b32_sdwa v{24 + e}, 2, v{8 + e} dst_sel:DWORD dst_unused:UNUSED_PAD src0_sel:DWORD src1_sel:BYTE_0")
        a(f"    ds_add_rtn_u32 v{32 + e}, v{24 + e}, v6")
    for e in range(4):
        a(f"    v_lshrrev_b32 v7, 8, v{8 + e}")
        a(f"    v_lshl_or_b32 v{12 + e}, v7, 24, v{12 + e}")
        a(f"    v_and_b32 v7, 7, v7")
        a(f"    v_lshl_or_b32 v{12 + e}, v7, 20, v{12 + e}")
    a("""
    s_mov_b64 exec, -1
    s_waitcnt lgkmcnt(0)
    s_barrier
""")
    stamp(a, opt, 3)
    a("""
    ds_read_b128 v[52:55], v48
    ds_read_b32 v56, v1
    s_waitcnt lgkmcnt(1)
    v_add_u32 v49, v52, v53
    v_add_u32 v50, v49, v54
    v_add_u32 v57, v50, v55
    v_add_u32 v51, v50, v55
""")
    scan64(a, 57)
    a(f"""
    v_sub_u32 v58, v57, v51
    v_add_u32 v59, v58, v52
    v_add_u32 v60, v58, v49
    v_add_u32 v61, v58, v50
    ds_write_b128 v48, v[58:61] offset:1024
""")
    for e in range(4):
        a(f"    ds_read_b32 v{40 + e}, v{24 + e} offset:1024")
    a(f"""
    ds_read_b32 v62, v1 offset:1024
    s_mov_b64 exec, s[32:33]
    s_waitcnt lgkmcnt(1)
""")
    for e in range(4):
        a(f"    v_add_lshl_u32 v{40 + e}, v{40 + e}, v{32 + e}, 2")
        a(f"    ds_write_b32 v{40 + e}, v{12 + e} offset:2048")
    a(f"""
    s_mov_b64 exec, -1
    v_cmp_gt_u32 vcc, 256, v0
    s_waitcnt lgkmcnt(4)
    v_lshl_or_b32 v62, v56, 16, v62
    s_mov_b64 exec, vcc
    s_cbranch_execz K1_NOTAB
    buffer_store_dword v62, v63, s[24:27], s29 offen
K1_NOTAB:
    s_mov_b64 exec, -1
    s_waitcnt lgkmcnt(0)
    s_barrier
    ds_read_b128 v[8:11], v3 offset:2048
    s_mov_b64 exec, s[32:33]
    s_cbranch_execz K1_D
    s_waitcnt lgkmcnt(0)
    buffer_store_dwordx4 v[8:11], v3, s[24:27], s30 offen{FL[opt.get("rst", 0)]}
K1_D:
    s_mov_b64 exec, -1
""")
    stamp(a, opt, 4)
    if opt.get("diag"):
        a("    s_waitcnt vmcnt(0)")
    stamp(a, opt, 5)
    stamp(a, opt, 6, real=True)
    dump_stamps(a, opt, 7, 12, 13, 7, DIAG_OFF)
    a(f"""
    s_endpgm

K1_WPREP:
    v_cmp_gt_u32 vcc, 256, v0
    s_mov_b64 exec, vcc
    s_cbranch_execz K1_END
    s_sub_u32 s14, s2, 256
    s_lshr_b32 s15, s14, 3
    s_and_b32 s28, s14, 7
    v_and_b32 v1, 15, v0
    v_bfe_u32 v2, v0, 4, 2
    v_lshrrev_b32 v3, 6, v0
    v_lshlrev_b32 v3, 13, v3
    v_lshl_add_u32 v3, v2, 11, v3
    v_lshl_add_u32 v3, v1, 1, v3
    s_lshl_b32 s29, s28, 5
    v_add_u32 v3, s29, v3
    v_lshlrev_b32 v4, 4, v0
    s_lshl_b32 s30, s14, 12
    s_add_u32 s30, s30, {hex(WF_OFF)}
    s_cmp_eq_u32 s15, 0
    s_waitcnt lgkmcnt(0)
    s_cselect_b32 s16, s8, s10
    s_cselect_b32 s17, s9, s11
    s_and_b32 s17, s17, 0xffff
    s_mov_b32 s18, 0x8000
    s_mov_b32 s19, 0x20000
""")
    srd(a, 24, 12, 13, WS_SIZE)
    for j in range(8):
        a(f"    buffer_load_ushort v{8 + j}, v3, s[16:19], 0 offen offset:{j * 256}")
    a("    s_waitcnt vmcnt(0)")
    for j in range(4):
        a(f"    v_lshl_or_b32 v{16 + j}, v{9 + 2 * j}, 16, v{8 + 2 * j}")
    a(f"""
    buffer_store_dwordx4 v[16:19], v4, s[24:27], s30 offen
K1_END:
    s_endpgm
""")


V_IDX = [(2, 4), (116, 118)]
V_COFF = 3
V_SIDX, V_P, V_RA, V_FK, V_NEND = 6, 7, 8, 9, 10
V_QVA, V_QVB = 11, 12
V_SEG = 13
V_PA, V_PB, V_T, V_AP, V_APX = 14, 15, 16, 17, 18
V_REM = 19
V_A = 20
V_D0, V_D1 = 24, 28
V_Q = 32
V_X = 48
V_WV = 96
V_REC = 112
V_GA = 120
V_RA0, V_OOFF, V_GADDR, V_TADDR = 124, 125, 126, 127
V_PM = 88
NS = 4
S_KEY, S_W, S_ROUND = 3, 10, 11
S_XI, S_XR, S_OUT, S_WS = 12, 16, 20, 24
S_S, S_PEND, S_NEND, S_REM = 28, 29, 30, 31
S_M, S_NODE, S_SEL, S_SPLIT, S_T = 32, 34, 35, 36, 37
S_VALID = 38
S_HASB = 43
S_V, S_MORE, S_THR = 47, 46, 48
S_EX = 52
S_E = 42
PT = [1, 3, 5]


def seg_loads(a, tag):
    a(f"""
    buffer_load_dwordx4 {vr(V_REC, 4)}, v{V_SEG}, s[{S_WS}:{S_WS + 3}], 0 offen
""")


def seg_load_b(a, tag):
    a(f"""
    v_cmp_lt_i32 vcc, 16, v{V_REM}
    s_mov_b32 s{S_HASB}, 0
    s_cmp_eq_u64 vcc, 0
    s_cbranch_scc1 K2_NOB_{tag}
    s_mov_b32 s{S_HASB}, 1
    buffer_load_dwordx4 {vr(V_REC + 4, 4)}, v{V_SEG}, s[{S_WS}:{S_WS + 3}], 0 offen offset:64
K2_NOB_{tag}:
""")


def a_setup(a, src):
    a(f"    v_mov_b32_dpp v{V_A + 0}, v{src} quad_perm:[0,1,2,3] row_mask:0xf bank_mask:0x5")
    a(f"    v_mov_b32_dpp v{V_A + 1}, v{src} row_shr:4 row_mask:0xf bank_mask:0xa")
    a(f"    v_mov_b32_dpp v{V_A + 2}, v{src} row_shl:4 row_mask:0xf bank_mask:0x5")
    a(f"    v_mov_b32_dpp v{V_A + 3}, v{src} quad_perm:[0,1,2,3] row_mask:0xf bank_mask:0xa")


def smf(a, X):
    a(f"    v_smfmac_f32_16x16x64_bf16 {vr(V_D0, 4)}, {vr(V_A, 4)}, {vr(X, 8)}, v{V_SIDX}")
    a(f"    v_smfmac_f32_16x16x64_bf16 {vr(V_D1, 4)}, {vr(V_A, 4)}, {vr(X + 8, 8)}, v{V_SIDX}")


def xload(a, X, idx, half):
    if OPT.get("noload"):
        return
    s = f"s[{S_XI}:{S_XI + 3}]"
    fl = ["", " sc0", " sc1", " sc0 sc1"][OPT.get("xfl", 0)]
    a(f"    buffer_load_dwordx4 {vr(X + 4 * half, 4)}, {vr(idx, 2)}, {s}, 0 idxen offen{fl}")
    a(f"    buffer_load_dwordx4 {vr(X + 8 + 4 * half, 4)}, {vr(idx, 2)}, {s}, 0 idxen offen offset:128{fl}")


def qreads(a):
    a(f"    v_xor_b32 v{V_QVA}, v{V_QVA}, v{V_COFF}")
    a(f"    v_xor_b32 v{V_QVB}, v{V_QVB}, v{V_COFF}")
    a(f"    ds_read_b128 {vr(V_Q + 0, 4)}, v{V_QVA} offset:{L_QT}")
    a(f"    ds_read_b128 {vr(V_Q + 4, 4)}, v{V_QVA} offset:{L_QT + 128}")
    a(f"    ds_read_b128 {vr(V_Q + 8, 4)}, v{V_QVB} offset:{L_QT}")
    a(f"    ds_read_b128 {vr(V_Q + 12, 4)}, v{V_QVB} offset:{L_QT + 128}")


def dots(a, X, lo, hi):
    for i in range(lo, hi):
        if OPT.get("nodots"):
            continue
        xa = X + (i if i < 4 else 8 + i - 4)
        xb = X + 4 + (i if i < 4 else 8 + i - 4)
        ca = "0" if i == 0 else f"v{V_PA}"
        cb = "0" if i == 0 else f"v{V_PB}"
        a(f"    v_dot2_f32_bf16 v{V_PA}, v{xa}, v{V_Q + i}, {ca}")
        a(f"    v_dot2_f32_bf16 v{V_PB}, v{xb}, v{V_Q + 8 + i}, {cb}")


def tail_patch(a, npairs_expr_sgpr):
    ia, ib = V_IDX[0]
    a(f"""
    v_lshrrev_b32 v{V_APX}, 3, v1
    s_sub_u32 s41, s40, 8
    s_cselect_b32 s41, 0, s41
    v_cmp_gt_u32 vcc, s40, v{V_APX}
    v_cmp_gt_u32 s[{S_EX}:{S_EX + 1}], s41, v{V_APX}
    s_nop 1
    v_cndmask_b32 v{ia}, v{V_PM}, v{ia}, vcc
    v_cndmask_b32_e64 v{ib}, v{V_PM}, v{ib}, s[{S_EX}:{S_EX + 1}]
""")


def step_early(a, s):
    X = V_X + 16 * s
    XN = V_X + 16 * (1 - s)
    ia, ib = V_IDX[0]
    pos = OPT["early"]
    a(f"""
K2_STEP{s}:
    s_waitcnt vmcnt(0) lgkmcnt(0)
""")

    def loads(tag):
        if OPT.get("tp"):
            a(f"""
    s_cmp_le_u32 s{S_REM}, 1
    s_cbranch_scc1 K2_LAST{s}
K2_LASTB{s}:
""")
        else:
            a(f"""
    s_cmp_eq_u32 s{S_REM}, 0
    s_cbranch_scc1 K2_SKIP{tag}{s}
""")
        xload(a, XN, ia, 0)
        xload(a, XN, ib, 1)
        a(f"""
    ds_read_u16 v{ia}, v{V_RA} offset:{(s + 2) * 64}
    ds_read_u16 v{ib}, v{V_RA} offset:{(s + 2) * 64 + 32}
K2_SKIP{tag}{s}:
""")

    if pos == 1:
        loads("A")
    dots(a, X, 0, 4)
    if pos == 2:
        loads("A")
    dots(a, X, 4, 8)
    if pos == 3:
        loads("A")
    a(f"""
    v_xor_b32 v{V_QVA}, v{V_QVA}, v{V_COFF}
    v_xor_b32 v{V_QVB}, v{V_QVB}, v{V_COFF}
    s_add_u32 s{S_PEND}, s{S_PEND}, 16
    v_permlane32_swap_b32 v{V_PA}, v{V_PB}
    ds_read_b128 {vr(V_Q + 0, 4)}, v{V_QVA} offset:{L_QT}
    ds_read_b128 {vr(V_Q + 4, 4)}, v{V_QVA} offset:{L_QT + 128}
    v_permlane16_swap_b32 v{V_PA}, v{V_PB}
    ds_read_b128 {vr(V_Q + 8, 4)}, v{V_QVB} offset:{L_QT}
    ds_read_b128 {vr(V_Q + 12, 4)}, v{V_QVB} offset:{L_QT + 128}
    v_add_f32_dpp v{V_T}, v{V_PA}, v{V_PA} row_shl:4 row_mask:0xf bank_mask:0x5
    v_add_f32_dpp v{V_T}, v{V_PB}, v{V_PB} row_shr:4 row_mask:0xf bank_mask:0xa
    ds_read_u16 v{V_QVA}, v{V_RA} offset:{(s + 2) * 64 + 2}
    ds_read_u16 v{V_QVB}, v{V_RA} offset:{(s + 2) * 64 + 34}
    v_add_f32_dpp v{V_T}, v{V_T}, v{V_T} quad_perm:[1,0,3,2] row_mask:0xf bank_mask:0xf
    s_nop 1
    v_add_f32_dpp v{V_T}, v{V_T}, v{V_T} quad_perm:[2,3,0,1] row_mask:0xf bank_mask:0xf
    v_exp_f32 v{V_T}, v{V_T}
    s_nop 0
    v_add_f32 v{V_T}, 1.0, v{V_T}
    v_rcp_f32 v{V_T}, v{V_T}
    s_cmp_le_u32 s{S_NEND}, s{S_PEND}
    v_cvt_pk_bf16_f32 v{V_AP}, v{V_T}, 0
    {"s_nop 0" if OPT.get("nobnd") else f"s_cbranch_scc1 K2_BND{s}"}
    s_nop 0
K2_RET{s}:
""")
    if not OPT.get("nopv"):
        a_setup(a, V_AP)
        a("    s_nop 1")
        smf(a, X)
    if pos == 4:
        loads("A")
    if s == 1:
        a(f"    v_add_u32 v{V_RA}, 128, v{V_RA}")
    a(f"""
    s_sub_u32 s{S_REM}, s{S_REM}, 1
    s_cbranch_scc1 K2_LOOP_END
""")
    if OPT.get("prio"):
        a(f"""
    s_cmp_eq_u32 s{S_REM}, s{S_THR}
    s_cbranch_scc1 K2_PRIO{s}
K2_PRIOB{s}:
""")


def step(a, s):
    if OPT.get("early"):
        return step_early(a, s)
    ns = OPT["ns"]
    X = V_X + 16 * s
    ia, ib = V_IDX[0]
    a(f"""
K2_STEP{s}:
    s_cmp_lt_u32 s{S_REM}, {ns - 1}
    s_cbranch_scc1 K2_TAIL{s}
    s_waitcnt vmcnt({4 * (ns - 1)}) lgkmcnt(2)
K2_BACK{s}:
""")
    dots(a, X, 0, 8)
    if OPT.get("fill"):
        a(f"""
    v_xor_b32 v{V_QVA}, v{V_QVA}, v{V_COFF}
    v_xor_b32 v{V_QVB}, v{V_QVB}, v{V_COFF}
    s_add_u32 s{S_PEND}, s{S_PEND}, 16
    v_permlane32_swap_b32 v{V_PA}, v{V_PB}
    ds_read_b128 {vr(V_Q + 0, 4)}, v{V_QVA} offset:{L_QT}
    ds_read_b128 {vr(V_Q + 4, 4)}, v{V_QVA} offset:{L_QT + 128}
    v_permlane16_swap_b32 v{V_PA}, v{V_PB}
    ds_read_b128 {vr(V_Q + 8, 4)}, v{V_QVB} offset:{L_QT}
    ds_read_b128 {vr(V_Q + 12, 4)}, v{V_QVB} offset:{L_QT + 128}
    v_add_f32_dpp v{V_T}, v{V_PA}, v{V_PA} row_shl:4 row_mask:0xf bank_mask:0x5
    v_add_f32_dpp v{V_T}, v{V_PB}, v{V_PB} row_shr:4 row_mask:0xf bank_mask:0xa
    ds_read_u16 v{V_QVA}, v{V_RA} offset:{(s + 2) * 64 + 2}
    ds_read_u16 v{V_QVB}, v{V_RA} offset:{(s + 2) * 64 + 34}
    v_add_f32_dpp v{V_T}, v{V_T}, v{V_T} quad_perm:[1,0,3,2] row_mask:0xf bank_mask:0xf
    s_nop 1
    v_add_f32_dpp v{V_T}, v{V_T}, v{V_T} quad_perm:[2,3,0,1] row_mask:0xf bank_mask:0xf
    v_exp_f32 v{V_T}, v{V_T}
    s_nop 0
    v_add_f32 v{V_T}, 1.0, v{V_T}""")
    else:
        qreads(a)
        a(f"""
    ds_read_u16 v{V_QVA}, v{V_RA} offset:{(s + 2) * 64 + 2}
    ds_read_u16 v{V_QVB}, v{V_RA} offset:{(s + 2) * 64 + 34}
    v_permlane32_swap_b32 v{V_PA}, v{V_PB}
    s_add_u32 s{S_PEND}, s{S_PEND}, 16
    s_nop 0
    v_permlane16_swap_b32 v{V_PA}, v{V_PB}
    s_nop 1
    v_add_f32_dpp v{V_T}, v{V_PA}, v{V_PA} row_shl:4 row_mask:0xf bank_mask:0x5
    v_add_f32_dpp v{V_T}, v{V_PB}, v{V_PB} row_shr:4 row_mask:0xf bank_mask:0xa
    s_nop 1
    v_add_f32_dpp v{V_T}, v{V_T}, v{V_T} quad_perm:[1,0,3,2] row_mask:0xf bank_mask:0xf
    s_nop 1
    v_add_f32_dpp v{V_T}, v{V_T}, v{V_T} quad_perm:[2,3,0,1] row_mask:0xf bank_mask:0xf
    v_exp_f32 v{V_T}, v{V_T}
    s_nop 0
    v_add_f32 v{V_T}, 1.0, v{V_T}""")
    a(f"""
    v_rcp_f32 v{V_T}, v{V_T}
    s_cmp_le_u32 s{S_NEND}, s{S_PEND}
    v_cvt_pk_bf16_f32 v{V_AP}, v{V_T}, 0
    {"s_nop 0" if OPT.get("nobnd") else f"s_cbranch_scc1 K2_BND{s}"}
    s_nop 0
K2_RET{s}:
""")
    if not OPT.get("nopv"):
        a_setup(a, V_AP)
        a("    s_nop 1")
        smf(a, X)
    a(f"""
    s_cmp_lt_u32 s{S_REM}, {ns}
    s_cbranch_scc1 K2_SKIP{s}
    s_waitcnt lgkmcnt(6)
""")
    xload(a, X, ia, 0)
    xload(a, X, ib, 1)
    a(f"""
    ds_read_u16 v{ia}, v{V_RA} offset:{(s + ns + 1) * 64}
    ds_read_u16 v{ib}, v{V_RA} offset:{(s + ns + 1) * 64 + 32}
K2_SKIP{s}:
""")
    if s == ns - 1:
        a(f"    v_add_u32 v{V_RA}, {ns * 64}, v{V_RA}")
    a(f"""
    s_sub_u32 s{S_REM}, s{S_REM}, 1
    s_cbranch_scc1 K2_LOOP_END
""")
    if OPT.get("prio"):
        a(f"""
    s_cmp_eq_u32 s{S_REM}, s{S_THR}
    s_cbranch_scc1 K2_PRIO{s}
K2_PRIOB{s}:
""")


def step_ool(a, s):
    X = V_X + 16 * s
    if not OPT.get("early"):
        a(f"K2_TAIL{s}:")
        for r in range(OPT["ns"] - 2, 0, -1):
            a(f"""
    s_cmp_eq_u32 s{S_REM}, {r}
    s_cbranch_scc0 K2_TAIL{s}_{r}
    s_waitcnt vmcnt({4 * r}) lgkmcnt(0)
    s_branch K2_BACK{s}
K2_TAIL{s}_{r}:
""")
        a(f"""
    s_waitcnt vmcnt(0) lgkmcnt(0)
    s_branch K2_BACK{s}
""")
    a(f"""
""")
    if OPT.get("inl"):
        T0 = V_REC
        a(f"""
K2_BND{s}:
    s_sub_u32 s{S_SPLIT}, s{S_NEND}, s{S_PEND}
    s_add_u32 s{S_SPLIT}, s{S_SPLIT}, 16
    v_cmp_gt_u32 vcc, s{S_SPLIT}, v{V_P}
    s_lshl_b32 s{S_T}, s{S_NODE}, 8
    s_add_u32 s{S_T}, s{S_T}, {L_AGG}
    v_cndmask_b32 v{V_APX}, 0, v{V_AP}, vcc
    v_cndmask_b32_e64 v{V_AP}, v{V_AP}, 0, vcc
    s_and_b32 s40, s{S_NODE}, 15
    s_lshl_b32 s40, s40, 4
""")
        a_setup(a, V_APX)
        a(f"""
    s_or_b32 s{S_T}, s{S_T}, s40
    v_xor_b32 v{V_APX}, s{S_T}, v{V_FK}
""")
        smf(a, X)
        a(f"""
    s_mov_b32 s{S_NEND}, -1
    s_cmp_eq_u64 s[{S_M}:{S_M + 1}], 0
    s_cbranch_scc1 K2_BLAST{s}
    s_ff1_i32_b64 s{S_NODE}, s[{S_M}:{S_M + 1}]
    s_bitset0_b64 s[{S_M}:{S_M + 1}], s{S_NODE}
    v_readlane_b32 s{S_NEND}, v{V_NEND}, s{S_NODE}
    s_nop 1
K2_BFL{s}:
""")
        for i in range(4):
            a(f"    v_permlane32_swap_b32 v{V_D0 + i}, v{V_D1 + i}")
        for i in range(4):
            a(f"    v_add_f32_dpp v{V_D0 + i}, v{V_D1 + i}, v{V_D0 + i} row_shl:8 row_mask:0xf bank_mask:0x3")
        a(f"""
    s_cmp_lg_u32 s{S_ROUND}, 0
    s_cbranch_scc1 K2_BRMW{s}
K2_BPK{s}:
    v_cvt_pk_bf16_f32 v{T0 + 0}, v{V_D0 + 0}, v{V_D0 + 1}
    v_cvt_pk_bf16_f32 v{T0 + 1}, v{V_D0 + 2}, v{V_D0 + 3}
    s_mov_b64 exec, s[{S_VALID}:{S_VALID + 1}]
    ds_write_b64 v{V_APX}, {vr(T0, 2)}
    s_mov_b64 exec, -1
""")
        for i in range(4):
            a(f"    v_mov_b64 {vr(V_D0 + 2 * i, 2)}, 0")
        a(f"""
    s_cmp_le_u32 s{S_NEND}, s{S_PEND}
    s_cbranch_scc0 K2_RET{s}
    s_branch K2_BND{s}
K2_BLAST{s}:
    s_nop 5
    s_branch K2_BFL{s}
K2_BRMW{s}:
    ds_read_b64 {vr(T0, 2)}, v{V_APX}
    s_waitcnt lgkmcnt(0)
    v_lshlrev_b32 v{T0 + 2}, 16, v{T0}
    v_and_b32 v{T0 + 3}, 0xffff0000, v{T0}
    v_add_f32 v{V_D0 + 0}, v{V_D0 + 0}, v{T0 + 2}
    v_add_f32 v{V_D0 + 1}, v{V_D0 + 1}, v{T0 + 3}
    v_lshlrev_b32 v{T0 + 2}, 16, v{T0 + 1}
    v_and_b32 v{T0 + 3}, 0xffff0000, v{T0 + 1}
    v_add_f32 v{V_D0 + 2}, v{V_D0 + 2}, v{T0 + 2}
    v_add_f32 v{V_D0 + 3}, v{V_D0 + 3}, v{T0 + 3}
    s_branch K2_BPK{s}
""")
    else:
        a(f"""
K2_BND{s}:
    s_sub_u32 s{S_SPLIT}, s{S_NEND}, s{S_PEND}
    s_add_u32 s{S_SPLIT}, s{S_SPLIT}, 16
    v_cmp_gt_u32 vcc, s{S_SPLIT}, v{V_P}
    s_mov_b32 s{S_SEL}, {s}
    s_nop 0
    v_cndmask_b32 v{V_APX}, 0, v{V_AP}, vcc
    v_cndmask_b32_e64 v{V_AP}, v{V_AP}, 0, vcc
    s_nop 1
""")
        a_setup(a, V_APX)
        a("    s_nop 1")
        smf(a, X)
        a("    s_branch K2_FLUSH")
    if OPT.get("tp") and OPT.get("early"):
        a(f"""
K2_LAST{s}:
    s_cmp_eq_u32 s{S_REM}, 0
    s_cbranch_scc1 K2_SKIPA{s}
    s_sub_u32 s40, s{S_E}, s{S_PEND}
    s_sub_u32 s40, s40, {16 if OPT["early"] < 3 or True else 0}
""")
        tail_patch(a, None)
        a(f"    s_branch K2_LASTB{s}")
    if OPT.get("prio"):
        a(f"""
K2_PRIO{s}:
    s_cmp_eq_u32 s{S_THR}, {PT[2] - 1}
    s_cbranch_scc0 K2_PRIO{s}_B
    s_setprio 2
    s_mov_b32 s{S_THR}, {PT[1] - 1}
    s_branch K2_PRIOB{s}
K2_PRIO{s}_B:
    s_cmp_eq_u32 s{S_THR}, {PT[1] - 1}
    s_cbranch_scc0 K2_PRIO{s}_C
    s_setprio 1
    s_mov_b32 s{S_THR}, {PT[0] - 1}
    s_branch K2_PRIOB{s}
K2_PRIO{s}_C:
    s_setprio 0
    s_mov_b32 s{S_THR}, -1
    s_branch K2_PRIOB{s}
""")


PARK_N = [0]


def park(a):
    n = PARK_N[0]
    PARK_N[0] += 1
    a(f"""
    s_cmp_lt_u32 s{S_W}, 8
    s_cbranch_scc1 K2_NOPARK{n}
    s_cmp_lg_u32 s{S_ROUND}, 0
    s_cbranch_scc1 K2_NOPARK{n}
    s_and_b32 s40, s{S_W}, 7
    s_lshl_b32 s40, s40, 12
    s_add_u32 s40, s40, {L_WV}
    v_lshlrev_b32 v{V_PA}, 4, v1
    v_add_u32 v{V_PA}, s40, v{V_PA}
""")
    for ks in range(4):
        a(f"    ds_write_b128 v{V_PA}, {vr(V_WV + 4 * ks, 4)} offset:{ks * 1024}")
    a(f"K2_NOPARK{n}:")


def gen_k2(a, opt):
    ws = f"s[{S_WS}:{S_WS + 3}]"
    a(f"""
.globl {MAIN}
.p2align 8
.type {MAIN},@function
{MAIN}:
    s_cmp_ge_u32 s2, 256
    s_cbranch_scc1 K2_END
    s_load_dwordx2 s[8:9], s[0:1], 56
    s_load_dwordx2 s[4:5], s[0:1], 0
    s_load_dwordx2 s[6:7], s[0:1], 40
""")
    stamp(a, opt, 0, real=True)
    stamp(a, opt, 1)
    a(f"""
    v_lshrrev_b32 v1, 6, v0
    s_and_b32 s{S_KEY}, s2, 7
    s_lshl_b32 s{S_KEY}, s{S_KEY}, 5
    v_readfirstlane_b32 s{S_W}, v1
    s_lshr_b32 s40, s2, 3
    s_add_u32 s{S_KEY}, s{S_KEY}, s40
    v_and_b32 v32, 0x3fc, v0
{"    v_lshlrev_b32 v32, 8, v32" if opt.get("tabp") else ""}
    s_lshl_b32 s42, s{S_KEY}, {2 if opt.get("tabp") else 10}
    s_add_u32 s42, s42, {hex(TAB_OFF)}
    s_lshl_b32 s41, s{S_KEY}, 8
    v_lshrrev_b32 v33, 4, v0
    v_and_b32 v34, 15, v0
    v_lshlrev_b32 v35, 16, v33
    v_lshl_or_b32 v35, v34, 4, v35
    v_add_u32 v{V_OOFF}, s41, v35
    s_waitcnt lgkmcnt(0)
""")
    srd(a, S_WS, 8, 9, WS_SIZE)
    a(f"    buffer_load_dword v37, v32, {ws}, s42 offen")
    srd(a, S_XR, 4, 5, N_NODES * 256)
    a(f"""
    buffer_load_dwordx4 v[40:43], v{V_OOFF}, s[{S_XR}:{S_XR + 3}], 0 offen
""")
    if opt.get("spf"):
        nl = opt["spf"]
        a(f"""
    s_cmp_lg_u32 s{S_W}, 15
    s_cbranch_scc1 K2_NOSPF
    s_and_b32 s40, s2, 7
    s_mul_i32 s40, s40, 782
    s_add_u32 s40, s40, {391 + 6400 - 64 * nl}
    s_and_b32 s40, s40, 0xffffff80
    s_max_u32 s40, s40, 6400
    s_sub_u32 s40, s40, 6400
    s_lshr_b32 s46, s2, 3
    s_mul_i32 s46, s46, {8 * REC_STRIDE}
    s_add_u32 s40, s40, s46
    v_and_b32 v38, 63, v0
    v_lshrrev_b32 v39, 3, v38
    v_mul_u32_u24 v39, {REC_STRIDE}, v39
    v_and_b32 v38, 7, v38
    v_lshl_add_u32 v39, v38, 7, v39
    buffer_load_dword v93, v39, {ws}, s40 offen
""")
        if nl == 16:
            a(f"    buffer_load_dword v92, v39, {ws}, s40 offen offset:1024")
        a("K2_NOSPF:")
    a(f"""
    v_and_b32 v1, 63, v0
    v_lshlrev_b32 v36, 4, v1
    s_lshl_b32 s45, s{S_W}, 12
    s_add_u32 s45, s45, {hex(WF_OFF)}
    s_cmp_ge_u32 s{S_W}, 8
    s_cbranch_scc1 K2_NOWQ
""")
    for ks in range(4):
        a(f"    buffer_load_dwordx4 {vr(V_X + 4 * ks, 4)}, v36, {ws}, s45 offen offset:{ks * 1024}")
    a(f"""
K2_NOWQ:
    v_lshrrev_b32 v38, 2, v0
    v_mul_u32_u24 v{V_SEG}, {REC_STRIDE}, v38
    v_and_b32 v44, 3, v0
    v_lshl_add_u32 v{V_SEG}, v44, 4, v{V_SEG}
    v_lshlrev_b32 v{V_REM}, 2, v44
    v_mov_b64 v[44:45], 0
    v_mov_b64 v[46:47], 0
    v_lshlrev_b32 v38, 4, v0
    ds_write_b128 v38, v[44:47] offset:{L_AGG}
    v_and_b32 v39, 127, v0
    v_lshlrev_b32 v39, 2, v39
    ds_write_b32 v39, v44
    v_and_b32 v38, 15, v33
    v_xor_b32 v38, v34, v38
    v_lshlrev_b32 v38, 4, v38
    v_lshl_or_b32 v{V_TADDR}, v33, 8, v38
    s_and_b32 s44, s{S_W}, 7
    v_and_b32 v32, 15, v1
    v_lshrrev_b32 v33, 4, v1
    s_lshl_b32 s49, s44, 1
    v_lshrrev_b32 v38, 1, v33
    v_add_u32 v38, s49, v38
    v_and_b32 v39, 1, v33
    v_lshlrev_b32 v39, 3, v39
    v_lshl_or_b32 v39, v32, 8, v39
    s_cmp_lt_u32 s{S_W}, 8
    s_cselect_b32 s49, 7, 15
    v_and_b32 v34, s49, v32
    v_xor_b32 v38, v38, v34
    v_lshl_or_b32 v{V_GADDR}, v38, 4, v39
    v_xor_b32 v38, v33, v32
    v_lshlrev_b32 v38, 4, v38
    v_lshl_or_b32 v{V_GA}, v32, 8, v38
    v_xor_b32 v{V_GA + 1}, 64, v{V_GA}
    v_xor_b32 v{V_GA + 2}, 0x80, v{V_GA}
    v_xor_b32 v{V_GA + 3}, 0xc0, v{V_GA}
    ; lane constants of the main loop
    v_and_b32 v{V_COFF}, 7, v1
    v_and_b32 v{V_SIDX}, 3, v1
    v_lshlrev_b32 v{V_COFF}, 4, v{V_COFF}
    v_mul_u32_u24 v{V_SIDX}, 0x1111, v{V_SIDX}
    v_mov_b32 v5, v{V_COFF}
    v_lshlrev_b32 v{V_P}, 2, v33
    v_bfe_u32 v39, v1, 2, 1
    v_lshl_add_u32 v{V_P}, v39, 1, v{V_P}
    v_bfe_u32 v39, v1, 3, 1
    v_add_u32 v{V_P}, v39, v{V_P}
    v_lshrrev_b32 v39, 5, v1
    v_lshl_or_b32 v{V_FK}, v39, 7, v{V_COFF}
    v_and_b32 v39, 1, v33
    v_lshl_or_b32 v{V_FK}, v39, 3, v{V_FK}
    v_lshrrev_b32 v{V_RA0}, 3, v1
    v_lshlrev_b32 v{V_RA0}, 2, v{V_RA0}
    v_add_u32 v{V_RA0}, {L_LIST}, v{V_RA0}
    v_mov_b64 {vr(V_A, 2)}, 0
    v_mov_b64 {vr(V_A + 2, 2)}, 0
""")
    srd(a, S_XI, 4, 5, N_NODES, stride=256)
    srd(a, S_OUT, 6, 7, N_NODES * 256)
    a(f"""
    s_mov_b32 s{S_ROUND}, 0
    s_mov_b32 s{S_VALID}, 0x00ff00ff
    s_mov_b32 s{S_VALID + 1}, 0x00ff00ff
    s_and_b32 s{S_V}, s{S_W}, 3
    s_lshl_b32 s{S_V}, s{S_V}, 2
    s_lshr_b32 s40, s{S_W}, 2
    s_add_u32 s{S_V}, s{S_V}, s40
    s_cmp_ge_u32 s{S_W}, 8
    s_cbranch_scc1 K2_TABB
    s_waitcnt vmcnt(5)
    s_branch K2_TABC
K2_TABB:
    s_waitcnt vmcnt({1 + (opt.get("spf", 0) // 8)})
{"    s_cmp_eq_u32 s10, 15" if opt.get("spf") else ""}
{"    s_cbranch_scc1 K2_TABC" if opt.get("spf") else ""}
{"    s_waitcnt vmcnt(1)" if opt.get("spf") else ""}
K2_TABC:
""")
    stamp(a, opt, 2)
    a(f"""
    v_and_b32 v38, 0xffff, v37
    v_lshrrev_b32 v37, 16, v37
    v_lshl_add_u32 v{V_SEG}, v38, 2, v{V_SEG}
    v_sub_u32 v{V_REM}, v37, v{V_REM}
""")
    seg_loads(a, "r0")
    a(f"""
    s_cmp_ge_u32 s{S_W}, 8
    s_cbranch_scc1 K2_XWB
    s_waitcnt vmcnt(5)
    s_branch K2_XWC
K2_XWB:
    s_waitcnt vmcnt({1 + (opt.get("spf", 0) // 8)})
{"    s_cmp_eq_u32 s10, 15" if opt.get("spf") else ""}
{"    s_cbranch_scc1 K2_XWC" if opt.get("spf") else ""}
{"    s_waitcnt vmcnt(1)" if opt.get("spf") else ""}
K2_XWC:
    ds_write_b128 v{V_TADDR}, v[40:43] offset:{L_XT}
""")
    seg_load_b(a, "r0")
    a(f"""
    s_waitcnt lgkmcnt(0)
    s_barrier
""")
    stamp(a, opt, 3)
    a(f"""
    s_cmp_ge_u32 s{S_W}, 8
    s_cbranch_scc1 K2_PF
""")
    B0 = V_X + 16
    QD = [V_D0, V_D1, 40, 44]
    BR = [B0, B0 + 16, B0 + 32, B0]

    def qreads_tile(tt):
        for ks in range(4):
            a(f"    ds_read_b128 {vr(BR[tt] + 4 * ks, 4)}, v{V_GA + ks} offset:{L_XT + tt * 4096}")

    def qmfma(tt):
        for ks in range(4):
            c = "0" if ks == 0 else vr(QD[tt], 4)
            a(f"    v_mfma_f32_16x16x32_bf16 {vr(QD[tt], 4)}, {vr(V_X + 4 * ks, 4)}, {vr(BR[tt] + 4 * ks, 4)}, {c}")

    for tt in range(3):
        qreads_tile(tt)
    a("    s_waitcnt vmcnt(1)")
    a(f"    s_mov_b32 s50, {hex(f32bits(QSCALE))}")
    a(f"    s_mov_b32 s51, s50")
    a("    s_waitcnt lgkmcnt(8)")
    qmfma(0)
    a("    s_waitcnt lgkmcnt(4)")
    qmfma(1)
    qreads_tile(3)
    a("    s_waitcnt lgkmcnt(4)")
    qmfma(2)
    a("    s_waitcnt lgkmcnt(0)")
    qmfma(3)
    for tt in range(4):
        if tt == 3:
            a("    s_nop 1")
        for i in range(2):
            a(f"    v_pk_mul_f32 {vr(QD[tt] + 2 * i, 2)}, {vr(QD[tt] + 2 * i, 2)}, s[50:51]")
        a(f"    v_cvt_pk_bf16_f32 v{80 + 2 * tt}, v{QD[tt]}, v{QD[tt] + 1}")
        a(f"    v_cvt_pk_bf16_f32 v{81 + 2 * tt}, v{QD[tt] + 2}, v{QD[tt] + 3}")
        a(f"    ds_write_b64 v{V_GADDR}, {vr(80 + 2 * tt, 2)} offset:{L_QT + tt * 4096}")
    npf = opt.get("pf2", 0)
    npi = (npf + 7) // 8
    a(f"""
    s_branch K2_PASS1
K2_PF:
""")
    for ks in range(4):
        a(f"    buffer_load_dwordx4 {vr(V_WV + 4 * ks, 4)}, v36, {ws}, s45 offen offset:{ks * 1024}")
    if npf:
        a(f"""
    s_lshr_b32 s40, s2, 3
    s_mul_i32 s40, s40, {782 * 128}
    s_sub_u32 s41, s{S_W}, 8
    s_lshl_b32 s46, s41, 13
    s_add_u32 s40, s40, s46
    s_add_u32 s40, s40, {opt.get("pf", 0) * 256 * 128}
    v_lshlrev_b32 v38, 7, v1
    v_add_u32 v38, s40, v38
""")
        for i in range(npi):
            a(f"""
    s_cmp_lt_u32 s41, {npf - 8 * i}
    s_cselect_b32 s46, 0, 0x40000000
    v_add_u32 v39, s46, v38
    buffer_load_dword v{95 - i}, v39, s[{S_XR}:{S_XR + 3}], 0 offen
""")
            if i + 1 < npi:
                a("    v_add_u32 v38, 0x10000, v38")
    AD, RK, BS = 64, 72, 80
    a(f"""
K2_PASS1:
    v_mov_b32 v{V_T}, 1
    v_lshlrev_b32 v{V_PA}, 2, v1
    v_mov_b32 v{V_APX}, {L_FLAG}
""")
    for pp in range(OPT["ns"] if (OPT["ns"] > 1 and not OPT.get("early")) else 0):
        a(f"    v_mov_b32 v{V_Q + 4 * pp + 1}, v{V_COFF}")
        a(f"    v_mov_b32 v{V_Q + 4 * pp + 3}, v{V_COFF}")
    a(f"""
    s_cmp_lt_u32 s{S_W}, 8
    s_cbranch_scc1 K2_SW_0
    s_cmp_lg_u32 s{S_ROUND}, 0
    s_cbranch_scc1 K2_SW_0
    s_waitcnt vmcnt({4 + npi})
    s_branch K2_SW_1
K2_SW_0:
    s_waitcnt vmcnt(0)
K2_SW_1:
""")
    stamp(a, opt, 4)
    for d in range(4):
        a(f"    v_cmp_lt_i32 s[{S_EX + 2 * d}:{S_EX + 2 * d + 1}], {d}, v{V_REM}")
    for d in range(4):
        a(f"    s_mov_b64 exec, s[{S_EX + 2 * d}:{S_EX + 2 * d + 1}]")
        a(f"    v_lshlrev_b32_sdwa v{AD + d}, 2, v{V_REC + d} dst_sel:DWORD dst_unused:UNUSED_PAD src0_sel:DWORD src1_sel:BYTE_3")
        a(f"    ds_add_rtn_u32 v{RK + d}, v{AD + d}, v{V_T}")
    a(f"""
    s_mov_b64 exec, -1
    s_cmp_eq_u32 s{S_HASB}, 0
    s_cbranch_scc1 K2_P1_NOB
""")
    for d in range(4):
        k = 4 + d
        a(f"    v_cmp_lt_i32 vcc, {16 + d}, v{V_REM}")
        a(f"    s_mov_b64 exec, vcc")
        a(f"    v_lshlrev_b32_sdwa v{AD + k}, 2, v{V_REC + k} dst_sel:DWORD dst_unused:UNUSED_PAD src0_sel:DWORD src1_sel:BYTE_3")
        a(f"    ds_add_rtn_u32 v{RK + k}, v{AD + k}, v{V_T}")
    a(f"""
    s_mov_b64 exec, -1
    v_cmp_lt_i32 vcc, 32, v{V_REM}
    s_cmp_eq_u64 vcc, 0
    s_cbranch_scc1 K2_P1_NOB
    s_mov_b64 exec, vcc
    ds_write_b32 v{V_APX}, v{V_T}
    s_mov_b64 exec, -1
K2_P1_NOB:
    s_waitcnt lgkmcnt(0)
    s_barrier
""")
    stamp(a, opt, 5)
    a(f"""
    ; per-node counts -> positions (lane = node): v_nend = inclusive sum, v_t = exclusive sum
    ds_read_b32 v{V_NEND}, v{V_PA}
    ds_read_b32 v{V_PB}, v{V_PA}
    ds_read_b32 v{V_APX}, v{V_APX}
    s_waitcnt lgkmcnt(0)
    v_readfirstlane_b32 s{S_MORE}, v{V_APX}
""")
    scan64(a, V_NEND)
    a(f"""
    s_nop 0
    v_readlane_b32 s{S_T}, v{V_NEND}, 63
    v_sub_u32 v{V_T}, v{V_NEND}, v{V_PB}
    v_add_u32 v{V_AP}, v{V_T}, v{V_NEND}
    v_cmp_lt_u32 s[{S_M}:{S_M + 1}], 0, v{V_PB}
""")
    for k in range(4):
        a(f"    ds_bpermute_b32 v{BS + k}, v{AD + k}, v{V_T}")
    a(f"""
    s_mul_i32 s40, s{S_V}, s{S_T}
    s_add_u32 s41, s40, s{S_T}
    s_add_u32 s40, s40, 7
    s_lshr_b32 s40, s40, 3
    s_add_u32 s41, s41, 7
    s_lshr_b32 s41, s41, 3
    v_cmp_le_u32 vcc, s40, v{V_AP}
    s_and_b64 s[{S_M}:{S_M + 1}], s[{S_M}:{S_M + 1}], vcc
    v_cmp_gt_u32 vcc, s41, v{V_AP}
    s_and_b64 s[{S_M}:{S_M + 1}], s[{S_M}:{S_M + 1}], vcc
    s_mov_b32 s{S_S}, 0
    s_mov_b32 s{S_REM}, 0
    s_cmp_eq_u64 s[{S_M}:{S_M + 1}], 0
    s_cbranch_scc1 K2_NOWORK_A
    s_ff1_i32_b64 s40, s[{S_M}:{S_M + 1}]
    s_flbit_i32_b64 s41, s[{S_M}:{S_M + 1}]
    s_sub_u32 s41, 63, s41
    v_readlane_b32 s{S_S}, v{V_T}, s40
    v_readlane_b32 s42, v{V_NEND}, s41
K2_NOWORK_A:
    s_waitcnt lgkmcnt(0)
""")
    for d in range(4):
        a(f"    s_mov_b64 exec, s[{S_EX + 2 * d}:{S_EX + 2 * d + 1}]")
        a(f"    v_add_lshl_u32 v{BS + d}, v{BS + d}, v{RK + d}, 2")
        a(f"    ds_write_b32 v{BS + d}, v{V_REC + d} offset:{L_LIST}")
    a(f"""
    s_mov_b64 exec, -1
    s_cmp_eq_u32 s{S_HASB}, 0
    s_cbranch_scc1 K2_P2_NOB
""")
    for k in range(4, 8):
        a(f"    ds_bpermute_b32 v{BS + k}, v{AD + k}, v{V_T}")
    a("    s_waitcnt lgkmcnt(0)")
    for d in range(4):
        k = 4 + d
        a(f"    v_cmp_lt_i32 vcc, {16 + d}, v{V_REM}")
        a(f"    s_mov_b64 exec, vcc")
        a(f"    v_add_lshl_u32 v{BS + k}, v{BS + k}, v{RK + k}, 2")
        a(f"    ds_write_b32 v{BS + k}, v{V_REC + k} offset:{L_LIST}")
    a(f"""
    s_mov_b64 exec, -1
K2_P2_NOB:
    s_cmp_eq_u64 s[{S_M}:{S_M + 1}], 0
    s_cbranch_scc1 K2_NOWORK_B
    s_sub_u32 s{S_REM}, s42, s{S_S}
    s_add_u32 s{S_REM}, s{S_REM}, 15
    s_lshr_b32 s{S_REM}, s{S_REM}, 4
    s_min_u32 s{S_REM}, s{S_REM}, 600
K2_NOWORK_B:
    s_lshl_b32 s40, s{S_S}, 2
    v_add_u32 v{V_RA}, s40, v{V_RA0}
    s_waitcnt lgkmcnt(0)
    s_barrier
""")
    stamp(a, opt, 6)
    if opt.get("diag"):
        a(f"    s_mov_b32 s{S_ST + 24}, s{S_REM}")
    a(f"""
    s_cmp_eq_u32 s{S_REM}, 0
    s_cbranch_scc1 K2_IDLE
""")
    ns = 1 if OPT.get("early") else OPT["ns"]
    PIDX = (lambda pp: (V_Q + 4 * pp, V_Q + 4 * pp + 2)) if ns > 1 else (lambda pp: V_IDX[0])
    for pp in range(ns):
        a(f"    ds_read_u16 v{PIDX(pp)[0]}, v{V_RA} offset:{pp * 64}")
        a(f"    ds_read_u16 v{PIDX(pp)[1]}, v{V_RA} offset:{pp * 64 + 32}")
    a(f"    ds_read_u16 v{V_QVA}, v{V_RA} offset:2")
    a(f"    ds_read_u16 v{V_QVB}, v{V_RA} offset:34")
    if OPT.get("tp"):
        a(f"""
    v_mov_b32 v{V_PM}, 0xffff
    s_cmp_eq_u32 s{S_REM}, 1
    s_cbranch_scc0 K2_PRO_FULL
    s_sub_u32 s40, s{S_E}, s{S_S}
    s_waitcnt lgkmcnt(2)
""")
        tail_patch(a, None)
        a("K2_PRO_FULL:")
    if OPT.get("prio"):
        a("    s_setprio 3")
    if ns == 4:
        park(a)
    for pp in range(ns):
        if pp > 0:
            a(f"    s_cmp_le_u32 s{S_REM}, {pp}")
            a(f"    s_cbranch_scc1 K2_PRO_DONE")
        a(f"    s_waitcnt lgkmcnt({min(15, 2 * (ns - pp))})" if ns < 4 else ("    s_waitcnt lgkmcnt(0)" if pp == 0 else ""))
        xload(a, V_X + 16 * pp, PIDX(pp)[0], 0)
        xload(a, V_X + 16 * pp, PIDX(pp)[1], 1)
        if OPT.get("prio") and pp < 2:
            a(f"    s_setprio {max(0, 1 - pp)}")
    a(f"""
K2_PRO_DONE:
    s_waitcnt lgkmcnt(0)
""")
    qreads(a)
    a(f"""
    ds_read_u16 v{V_QVA}, v{V_RA} offset:{64 + 2}
    ds_read_u16 v{V_QVB}, v{V_RA} offset:{64 + 34}
    ds_read_u16 v{V_IDX[0][0]}, v{V_RA} offset:{ns * 64}
    ds_read_u16 v{V_IDX[0][1]}, v{V_RA} offset:{ns * 64 + 32}
    s_sub_u32 s{S_REM}, s{S_REM}, 1
    s_mov_b32 s{S_PEND}, s{S_S}
    s_mov_b32 s{S_SEL}, {OPT["ns"]}
""")
    if OPT.get("prio"):
        a(f"""
    s_mov_b32 s{S_THR}, -1
    s_setprio 0
    s_cmp_lt_u32 s{S_REM}, {PT[0]}
    s_cbranch_scc1 K2_PRIO_SET
    s_mov_b32 s{S_THR}, {PT[0] - 1}
    s_setprio 1
    s_cmp_lt_u32 s{S_REM}, {PT[1]}
    s_cbranch_scc1 K2_PRIO_SET
    s_mov_b32 s{S_THR}, {PT[1] - 1}
    s_setprio 2
    s_cmp_lt_u32 s{S_REM}, {PT[2]}
    s_cbranch_scc1 K2_PRIO_SET
    s_mov_b32 s{S_THR}, {PT[2] - 1}
    s_setprio 3
K2_PRIO_SET:
""")
    if OPT.get("inl"):
        a(f"""
    s_ff1_i32_b64 s{S_NODE}, s[{S_M}:{S_M + 1}]
    s_bitset0_b64 s[{S_M}:{S_M + 1}], s{S_NODE}
    v_readlane_b32 s{S_NEND}, v{V_NEND}, s{S_NODE}
""")
        for i in range(4):
            a(f"    v_mov_b64 {vr(V_D0 + 2 * i, 2)}, 0")
        a("K2_LOOP:")
    else:
        a(f"""
    s_branch K2_NEXTNODE
K2_LOOP:
""")
    NS = OPT["ns"]
    for s in range(NS):
        step(a, s)
    a("    s_branch K2_STEP0")
    for s in range(NS):
        step_ool(a, s)
    a("K2_IDLE:")
    if NS == 4:
        park(a)
    a("    s_branch K2_LOOP_END")

    if not OPT.get("inl"):
        T0 = V_REC
        a(f"""
K2_FLUSH:
    s_lshl_b32 s{S_T}, s{S_NODE}, 8
    s_add_u32 s{S_T}, s{S_T}, {L_AGG}
    s_and_b32 s40, s{S_NODE}, 15
    s_lshl_b32 s40, s40, 4
    s_or_b32 s{S_T}, s{S_T}, s40
    v_xor_b32 v{V_APX}, s{S_T}, v{V_FK}
    s_nop 3
""")
        for i in range(4):
            a(f"    v_permlane32_swap_b32 v{V_D0 + i}, v{V_D1 + i}")
        for i in range(4):
            a(f"    v_add_f32_dpp v{V_D0 + i}, v{V_D1 + i}, v{V_D0 + i} row_shl:8 row_mask:0xf bank_mask:0x3")
        a(f"""
    s_cmp_lg_u32 s{S_ROUND}, 0
    s_cbranch_scc1 K2_FLUSH_RMW
K2_FLUSH_PACK:
    v_cvt_pk_bf16_f32 v{T0 + 0}, v{V_D0 + 0}, v{V_D0 + 1}
    v_cvt_pk_bf16_f32 v{T0 + 1}, v{V_D0 + 2}, v{V_D0 + 3}
    s_mov_b64 exec, s[{S_VALID}:{S_VALID + 1}]
    ds_write_b64 v{V_APX}, {vr(T0, 2)}
    s_mov_b64 exec, -1
K2_NEXTNODE:
    s_mov_b32 s{S_NEND}, -1
    s_cmp_eq_u64 s[{S_M}:{S_M + 1}], 0
    s_cbranch_scc1 K2_FLUSH_RET
    s_ff1_i32_b64 s{S_NODE}, s[{S_M}:{S_M + 1}]
    s_bitset0_b64 s[{S_M}:{S_M + 1}], s{S_NODE}
    v_readlane_b32 s{S_NEND}, v{V_NEND}, s{S_NODE}
""")
        for i in range(4):
            a(f"    v_mov_b64 {vr(V_D0 + 2 * i, 2)}, 0")
        a(f"""
    s_cmp_le_u32 s{S_NEND}, s{S_PEND}
    s_cbranch_scc1 K2_FLUSH_AGAIN
K2_FLUSH_RET:
""")
        for s in range(NS):
            a(f"    s_cmp_eq_u32 s{S_SEL}, {s}")
            a(f"    s_cbranch_scc1 K2_RET{s}")
        a("    s_branch K2_LOOP")
        a("K2_FLUSH_AGAIN:")
        for s in range(NS - 1):
            a(f"    s_cmp_eq_u32 s{S_SEL}, {s}")
            a(f"    s_cbranch_scc1 K2_BND{s}")
        a(f"    s_branch K2_BND{NS - 1}")
        a(f"""
K2_FLUSH_RMW:
    ds_read_b64 {vr(T0, 2)}, v{V_APX}
    s_waitcnt lgkmcnt(0)
    v_lshlrev_b32 v{T0 + 2}, 16, v{T0}
    v_and_b32 v{T0 + 3}, 0xffff0000, v{T0}
    v_add_f32 v{V_D0 + 0}, v{V_D0 + 0}, v{T0 + 2}
    v_add_f32 v{V_D0 + 1}, v{V_D0 + 1}, v{T0 + 3}
    v_lshlrev_b32 v{T0 + 2}, 16, v{T0 + 1}
    v_and_b32 v{T0 + 3}, 0xffff0000, v{T0 + 1}
    v_add_f32 v{V_D0 + 2}, v{V_D0 + 2}, v{T0 + 2}
    v_add_f32 v{V_D0 + 3}, v{V_D0 + 3}, v{T0 + 3}
    s_branch K2_FLUSH_PACK
""")
    a(f"""
K2_LOOP_END:
""")
    if OPT.get("prio"):
        a("    s_setprio 0")
    a(f"""
    s_cmp_lg_u32 s{S_MORE}, 0
    s_cbranch_scc1 K2_MORE
""")
    if NS == 4:
        a(f"""
    s_cmp_lt_u32 s{S_W}, 8
    s_cbranch_scc1 K2_NOFETCH
    s_and_b32 s40, s{S_W}, 7
    s_lshl_b32 s40, s40, 12
    s_add_u32 s40, s40, {L_WV}
    v_lshlrev_b32 v{V_PA}, 4, v1
    v_add_u32 v{V_PA}, s40, v{V_PA}
""")
        for ks in range(4):
            a(f"    ds_read_b128 {vr(V_WV + 4 * ks, 4)}, v{V_PA} offset:{ks * 1024}")
    a(f"""
K2_NOFETCH:
    s_waitcnt vmcnt(0) lgkmcnt(0)
""")
    stamp(a, opt, 7)
    a(f"""
    s_barrier
""")
    stamp(a, opt, 8)
    a(f"""
    s_cmp_lt_u32 s{S_W}, 8
    s_cbranch_scc1 K2_EPI_WAIT
""")
    EB = V_Q
    ED = [V_D0, V_D1, V_REC, V_REC + 4]
    for tt in range(4):
        for ks in range(4):
            a(f"    ds_read_b128 {vr(EB + (tt * 4 + ks) * 4, 4)}, v{V_GA + ks} offset:{L_AGG + tt * 4096}")
    for tt in range(4):
        a(f"    s_waitcnt lgkmcnt({4 * (3 - tt)})")
        for ks in range(4):
            c = "0" if ks == 0 else vr(ED[tt], 4)
            a(f"    v_mfma_f32_16x16x32_bf16 {vr(ED[tt], 4)}, {vr(V_WV + 4 * ks, 4)}, {vr(EB + (tt * 4 + ks) * 4, 4)}, {c}")
    a("    s_nop 3")
    for tt in range(4):
        if tt == 3:
            a("    s_nop 3")
        a(f"    v_cvt_pk_bf16_f32 v{16 + 2 * tt}, v{ED[tt]}, v{ED[tt] + 1}")
        a(f"    v_cvt_pk_bf16_f32 v{17 + 2 * tt}, v{ED[tt] + 2}, v{ED[tt] + 3}")
        a(f"    ds_write_b64 v{V_GADDR}, {vr(16 + 2 * tt, 2)} offset:{L_XT + tt * 4096}")
    a(f"""
K2_EPI_WAIT:
    s_waitcnt lgkmcnt(0)
    s_barrier
    ds_read_b128 v[40:43], v{V_TADDR} offset:{L_XT}
    s_waitcnt lgkmcnt(0)
    buffer_store_dwordx4 v[40:43], v{V_OOFF}, s[{S_OUT}:{S_OUT + 3}], 0 offen{FL[opt.get("ost", 2)]}
""")
    stamp(a, opt, 9)
    if opt.get("diag"):
        a("    s_waitcnt vmcnt(0)")
    stamp(a, opt, 10)
    stamp(a, opt, 11, real=True)
    dump_stamps(a, opt, 13, 8, 9, NW, DIAG_OFF + 0x100000)
    a(f"""
    s_endpgm

K2_MORE:
    s_waitcnt vmcnt(0) lgkmcnt(0)
    s_barrier
    s_add_u32 s{S_ROUND}, s{S_ROUND}, 1
    v_and_b32 v39, 127, v0
    v_lshlrev_b32 v39, 2, v39
    v_mov_b32 v38, 0
    ds_write_b32 v39, v38
    v_add_u32 v{V_SEG}, 128, v{V_SEG}
    v_subrev_u32 v{V_REM}, 32, v{V_REM}
""")
    seg_loads(a, "rn")
    seg_load_b(a, "rn")
    a(f"""
    s_waitcnt lgkmcnt(0)
    s_barrier
    s_branch K2_PASS1
K2_END:
    s_endpgm
""")


HEADER = f"""; Kernarg layout for this problem (64 bytes, ptrs only, base s[0:1]):
; Launch 1 buckets the edges by (dst & 255) and transposes the weights into d_ws.
; Launch 2 owns 49 destination nodes per workgroup and produces the output rows.
; @launch kernel={K1} grid=(272,1,1) block=(256,1,1) lds=8320
; @launch kernel={MAIN} grid=(256,1,1) block=({NW * 64},1,1) lds=@LDS@
.amdgcn_target "amdgcn-amd-amdhsa--gfx950"
.text
"""


def kd(name, vgpr, sgpr):
    acc = (vgpr + 3) // 4 * 4
    return f"""
.p2align 6
.amdhsa_kernel {name}
  .amdhsa_next_free_vgpr {vgpr}
  .amdhsa_next_free_sgpr {sgpr}
  .amdhsa_accum_offset {acc}
  .amdhsa_group_segment_fixed_size 0
  .amdhsa_kernarg_size 64
  .amdhsa_user_sgpr_count 2
  .amdhsa_user_sgpr_kernarg_segment_ptr 1
  .amdhsa_system_sgpr_workgroup_id_x 1
  .amdhsa_float_denorm_mode_32 3
.end_amdhsa_kernel
"""


def generate(opt=None):
    opt = opt or {}
    OPT.clear()
    OPT.update(opt)
    OPT.setdefault("early", 3)
    OPT.setdefault("tp", 0)
    OPT.setdefault("ns", 2 if OPT.get("early") else 1)
    OPT.setdefault("prio", 1)
    OPT.setdefault("pf2", 5)
    OPT.setdefault("k1w", 1)
    opt = dict(OPT)
    PARK_N[0] = 0
    if "pt" in opt:
        v = opt["pt"]
        PT[:] = [v // 100, (v // 10) % 10, v % 10]
    a = Asm()
    hdr = HEADER.replace("@LDS@", str(L_END if OPT["ns"] == 4 else L_WV))
    if opt.get("k1w"):
        hdr = hdr.replace("grid=(272,1,1) block=(256,1,1) lds=8320", "grid=(272,1,1) block=(448,1,1) lds=9216")
    a(hdr)
    (gen_k1_wide if opt.get("k1w") else gen_k1)(a, opt)
    gen_k2(a, opt)
    a('.section .rodata,"a"')
    sg = 96 if opt.get("diag") else 64
    a(kd(K1, 80, sg))
    a(kd(MAIN, 128, sg))
    return a.text()


if __name__ == "__main__":
    out = sys.argv[1] if len(sys.argv) > 1 else "gather_scatter__kernel_systems_refs_featgraph__graph.s"
    opt = {}
    for kv in sys.argv[2:]:
        k, _, v = kv.partition("=")
        opt[k] = int(v) if v else 1
    open(out, "w").write(generate(opt))
    print("wrote", out)
```

```python
import math
import sys

OPT = {}
FL = ["", " sc1", " nt", " sc0 sc1", " sc0 sc1 nt"]
MAIN = "gather_scatter__kernel_systems_refs_featgraph__graph_kernel"
K1 = "gs_bucket_kernel"

N_NODES = 12500
N_EDGES = 400000
CHUNK = 1564
REC_STRIDE = 6400
REC_OFF = 0
TAB_OFF = 0x190000
WF_OFF = 0x1D0000
WS_SIZE = 0x1E0000

L_CNT = 0
L_FLAG = 256
L_AGG = 1024
L_QT = 17408
L_XT = 33792
L_LIST = 50176
L_WV = 84224
L_END = 116992

NW = 16
P = 3

QSCALE = -math.log2(math.e) / math.sqrt(128.0)


def f32bits(x):
    import struct
    return struct.unpack("<I", struct.pack("<f", x))[0]


class Asm:
    def __init__(self):
        self.lines = []

    def __call__(self, text=""):
        for ln in text.strip("\n").split("\n"):
            self.lines.append(ln.rstrip())

    def text(self):
        return "\n".join(self.lines) + "\n"


def vr(a, n):
    return f"v[{a}:{a + n - 1}]"


def srd(a, dst, lo, hi, nrec, stride=0):
    a(f"    s_mov_b32 s{dst}, s{lo}")
    a(f"    s_and_b32 s{dst + 1}, s{hi}, 0xffff")
    if stride:
        a(f"    s_or_b32 s{dst + 1}, s{dst + 1}, {hex(stride << 16)}")
    a(f"    s_mov_b32 s{dst + 2}, {hex(nrec)}")
    a(f"    s_mov_b32 s{dst + 3}, 0x20000")


DIAG_OFF = 0x400000
S_ST = 60


def stamp(a, opt, i, real=False):
    if not opt.get("diag"):
        return
    op = "s_memrealtime" if real else "s_memtime"
    a(f"    {op} s[{S_ST + 2 * i}:{S_ST + 2 * i + 1}]")
    a("    s_waitcnt lgkmcnt(0)")


def dump_stamps(a, opt, n, ptr_lo, ptr_hi, waves_per_wg, base):
    if not opt.get("diag"):
        return
    a(f"    s_mov_b32 s52, s{ptr_lo}")
    a(f"    s_and_b32 s53, s{ptr_hi}, 0xffff")
    a(f"    s_mov_b32 s54, 0x1000000")
    a(f"    s_mov_b32 s55, 0x20000")
    a(f"    v_mov_b32 v2, 0")
    for i in range(n):
        a(f"    v_writelane_b32 v2, s{S_ST + 2 * i}, {i}")
    a(f"    v_lshrrev_b32 v3, 6, v0")
    a(f"    s_mul_i32 s56, s2, {waves_per_wg}")
    a(f"    v_add_u32 v3, s56, v3")
    a(f"    v_lshlrev_b32 v3, 6, v3")
    a(f"    v_and_b32 v4, 63, v0")
    a(f"    v_lshl_add_u32 v3, v4, 2, v3")
    a(f"    v_add_u32 v3, {hex(base)}, v3")
    a(f"    s_mov_b64 exec, 0xffff")
    a(f"    buffer_store_dword v2, v3, s[52:55], 0 offen")
    a(f"    s_mov_b64 exec, -1")


def scan64(a, reg):
    for ctl in ("row_shr:1", "row_shr:2", "row_shr:4", "row_shr:8"):
        a(f"    s_nop 1")
        a(f"    v_add_u32_dpp v{reg}, v{reg}, v{reg} {ctl} row_mask:0xf bank_mask:0xf bound_ctrl:1")
    a(f"    s_nop 1")
    a(f"    v_add_u32_dpp v{reg}, v{reg}, v{reg} row_bcast:15 row_mask:0xa bank_mask:0xf")
    a(f"    s_nop 1")
    a(f"    v_add_u32_dpp v{reg}, v{reg}, v{reg} row_bcast:31 row_mask:0xc bank_mask:0xf")


def k1_prefetch(a, opt, where):
    if opt.get("pfpos", 0) != where:
        return
    n = opt.get("pf", 0)
    if n:
        srd(a, 40, 34, 35, N_NODES * 256)
        a(f"""
    s_lshr_b32 s38, s2, 3
    s_mul_i32 s38, s38, {782 * 128}
    v_lshlrev_b32 v64, 7, v0
    v_add_u32 v64, s38, v64
""")
        for i in range(n):
            if i:
                a(f"    v_add_u32 v64, 0x8000, v64")
            if i == 3:
                a(f"    v_cmp_gt_u32 vcc, {782 - 768}, v0")
                a(f"    s_mov_b64 exec, vcc")
                a(f"    s_cbranch_execz K1_PF_DONE")
            a(f"    buffer_load_dword v{65 + i}, v64, s[40:43], 0 offen")
        if n > 3:
            a("K1_PF_DONE:")
            a("    s_mov_b64 exec, -1")
    if opt.get("pfm"):
        srd(a, 40, 34, 35, N_NODES * 256)
        a(f"""
    s_mul_i32 s38, s2, {98 * 128}
    v_lshlrev_b32 v64, 7, v0
    v_add_u32 v64, s38, v64
    v_mov_b32 v66, 0x7ffffff0
    v_cmp_gt_u32 vcc, 98, v0
    s_nop 1
    v_cndmask_b32 v64, v66, v64, vcc
    buffer_load_dword v65, v64, s[40:43], 0 offen
""")
    if opt.get("codepf"):
        a(f"""
    s_getpc_b64 s[44:45]
K1_PC:
    s_add_u32 s44, s44, {MAIN}-K1_PC
    s_addc_u32 s45, s45, 0
    v_and_b32 v70, 63, v0
    v_lshlrev_b32 v70, 7, v70
    v_min_u32 v70, K2_END-{MAIN}, v70
    global_load_dword v71, v70, s[44:45]
""")
    if opt.get("touch"):
        srd(a, 40, 36, 37, N_NODES * 256)
        a(f"""
    v_and_b32 v72, 1, v0
    v_lshlrev_b32 v72, 21, v72
    buffer_load_dword v73, v72, s[40:43], 0 offen
""")
        srd(a, 40, 34, 35, N_NODES * 256)
        a(f"""
    buffer_load_dword v74, v72, s[40:43], 0 offen
""")

def gen_k1(a, opt):
    a(f"""
.globl {K1}
.p2align 8
.type {K1},@function
{K1}:
    s_cmp_ge_u32 s2, 272
    s_cbranch_scc1 K1_END
    s_load_dwordx4 s[4:7], s[0:1], 8
    s_load_dwordx4 s[8:11], s[0:1], 24
    s_load_dwordx2 s[12:13], s[0:1], 56
    s_load_dwordx2 s[34:35], s[0:1], 0
    s_load_dwordx2 s[36:37], s[0:1], 40
    s_cmp_ge_u32 s2, 256
    s_cbranch_scc1 K1_WPREP
""")
    stamp(a, opt, 0, real=True)
    stamp(a, opt, 1)
    a(f"""
    v_lshlrev_b32 v1, 2, v0
    v_mov_b32 v2, 0
    ds_write_b32 v1, v2
    s_mul_i32 s14, s2, {CHUNK * 4}
    v_lshlrev_b32 v3, 4, v0
    v_add_u32 v4, s14, v3
    v_add_u32 v5, 0x1000, v4
    s_movk_i32 s15, {(CHUNK - 1024) // 4}
    s_cmp_eq_u32 s2, 255
    s_cselect_b32 s15, {(N_EDGES - 255 * CHUNK - 1024) // 4}, s15
    s_and_b32 s28, s2, 7
    s_lshl_b32 s28, s28, 5
    s_lshr_b32 s29, s2, 3
    s_add_u32 s28, s28, s29
    v_mov_b32 v6, 1
    v_cmp_gt_u32 vcc, s15, v0
    s_mov_b64 s[32:33], vcc
    s_waitcnt lgkmcnt(0)
""")
    srd(a, 16, 4, 5, N_EDGES * 4)
    srd(a, 20, 6, 7, N_EDGES * 4)
    srd(a, 24, 12, 13, WS_SIZE)
    a(f"""
    buffer_load_dwordx4 v[8:11], v4, s[20:23], 0 offen
    buffer_load_dwordx4 v[12:15], v4, s[16:19], 0 offen
    s_mov_b64 exec, s[32:33]
    s_cbranch_execz K1_A
    buffer_load_dwordx4 v[16:19], v5, s[20:23], 0 offen
    buffer_load_dwordx4 v[20:23], v5, s[16:19], 0 offen
K1_A:
    s_mov_b64 exec, -1
""")
    npf0 = 0
    if opt.get("pfpos", 0) == 0:
        npf0 = opt.get("pf", 0) + (1 if opt.get("codepf") else 0) + (2 if opt.get("touch") else 0) + (1 if opt.get("pfm") else 0)
    k1_prefetch(a, opt, 0)
    if npf0 and opt.get("pf", 0) > 3:
        npf0 -= 1
    a(f"""
    s_barrier
    s_waitcnt vmcnt({npf0})
""")
    k1_prefetch(a, opt, 1)
    stamp(a, opt, 2)

    def edges(dbase, sbase, abase, rbase):
        for e in range(4):
            a(f"    v_lshlrev_b32_sdwa v{abase + e}, 2, v{dbase + e} dst_sel:DWORD dst_unused:UNUSED_PAD src0_sel:DWORD src1_sel:BYTE_0")
            a(f"    ds_add_rtn_u32 v{rbase + e}, v{abase + e}, v6")
        for e in range(4):
            a(f"    v_lshrrev_b32 v7, 8, v{dbase + e}")
            a(f"    v_lshl_or_b32 v{sbase + e}, v7, 24, v{sbase + e}")
            a(f"    v_and_b32 v7, 7, v7")
            a(f"    v_lshl_or_b32 v{sbase + e}, v7, 20, v{sbase + e}")

    edges(8, 12, 24, 32)
    a("""
    s_mov_b64 exec, s[32:33]
    s_cbranch_execz K1_B
""")
    edges(16, 20, 28, 36)
    a("""
K1_B:
    s_mov_b64 exec, -1
    s_waitcnt lgkmcnt(0)
    s_barrier
""")
    stamp(a, opt, 3)
    a("""
    v_and_b32 v48, 63, v0
    v_lshlrev_b32 v48, 4, v48
    ds_read_b128 v[52:55], v48
    ds_read_b32 v56, v1
    s_waitcnt lgkmcnt(0)
    v_add_u32 v49, v52, v53
    v_add_u32 v50, v49, v54
    v_add_u32 v51, v50, v55
    v_mov_b32 v57, v51
""")
    scan64(a, 57)
    a(f"""
    v_sub_u32 v58, v57, v51
    v_add_u32 v59, v58, v52
    v_add_u32 v60, v58, v49
    v_add_u32 v61, v58, v50
    ds_write_b128 v48, v[58:61] offset:1024
""")
    for e in range(4):
        a(f"    ds_read_b32 v{40 + e}, v{24 + e} offset:1024")
    a("    ds_read_b32 v62, v1 offset:1024")
    a("""
    s_mov_b64 exec, s[32:33]
    s_cbranch_execz K1_C
""")
    for e in range(4):
        a(f"    ds_read_b32 v{44 + e}, v{28 + e} offset:1024")
    a("    s_waitcnt lgkmcnt(0)")
    for e in range(4):
        a(f"    v_add_lshl_u32 v{44 + e}, v{44 + e}, v{36 + e}, 2")
        a(f"    ds_write_b32 v{44 + e}, v{20 + e} offset:2048")
    a("""
K1_C:
    s_mov_b64 exec, -1
    s_waitcnt lgkmcnt(0)
""")
    for e in range(4):
        a(f"    v_add_lshl_u32 v{40 + e}, v{40 + e}, v{32 + e}, 2")
        a(f"    ds_write_b32 v{40 + e}, v{12 + e} offset:2048")
    a(f"""
    v_lshl_or_b32 v62, v56, 16, v62
    v_lshlrev_b32 v63, 10, v0
    s_lshl_b32 s29, s28, 2
    s_add_u32 s29, s29, {hex(TAB_OFF)}
    buffer_store_dword v62, v63, s[24:27], s29 offen
    s_mul_i32 s30, s28, {REC_STRIDE}
    v_add_u32 v5, 0x1000, v3
    s_waitcnt lgkmcnt(0)
    s_barrier
    ds_read_b128 v[8:11], v3 offset:2048
    s_mov_b64 exec, s[32:33]
    s_cbranch_execz K1_D
    ds_read_b128 v[12:15], v3 offset:6144
    s_waitcnt lgkmcnt(0)
    buffer_store_dwordx4 v[12:15], v5, s[24:27], s30 offen{FL[opt.get("rst", 0)]}
K1_D:
    s_mov_b64 exec, -1
    s_waitcnt lgkmcnt(0)
    buffer_store_dwordx4 v[8:11], v3, s[24:27], s30 offen{FL[opt.get("rst", 0)]}
""")
    stamp(a, opt, 4)
    if opt.get("diag"):
        a("    s_waitcnt vmcnt(0)")
    stamp(a, opt, 5)
    stamp(a, opt, 6, real=True)
    dump_stamps(a, opt, 7, 12, 13, 4, DIAG_OFF)
    a(f"""
    s_endpgm

K1_WPREP:
    s_sub_u32 s14, s2, 256
    s_lshr_b32 s15, s14, 3
    s_and_b32 s28, s14, 7
    v_and_b32 v1, 15, v0
    v_bfe_u32 v2, v0, 4, 2
    v_lshrrev_b32 v3, 6, v0
    v_lshlrev_b32 v3, 13, v3
    v_lshl_add_u32 v3, v2, 11, v3
    v_lshl_add_u32 v3, v1, 1, v3
    s_lshl_b32 s29, s28, 5
    v_add_u32 v3, s29, v3
    v_lshlrev_b32 v4, 4, v0
    s_lshl_b32 s30, s14, 12
    s_add_u32 s30, s30, {hex(WF_OFF)}
    s_cmp_eq_u32 s15, 0
    s_waitcnt lgkmcnt(0)
    s_cselect_b32 s16, s8, s10
    s_cselect_b32 s17, s9, s11
    s_and_b32 s17, s17, 0xffff
    s_mov_b32 s18, 0x8000
    s_mov_b32 s19, 0x20000
""")
    srd(a, 24, 12, 13, WS_SIZE)
    for j in range(8):
        a(f"    buffer_load_ushort v{8 + j}, v3, s[16:19], 0 offen offset:{j * 256}")
    a("    s_waitcnt vmcnt(0)")
    for j in range(4):
        a(f"    v_lshl_or_b32 v{16 + j}, v{9 + 2 * j}, 16, v{8 + 2 * j}")
    a(f"""
    buffer_store_dwordx4 v[16:19], v4, s[24:27], s30 offen
K1_END:
    s_endpgm
""")


def gen_k1_wide(a, opt):
    a(f"""
.globl {K1}
.p2align 8
.type {K1},@function
{K1}:
    s_cmp_ge_u32 s2, 272
    s_cbranch_scc1 K1_END
    s_load_dwordx4 s[4:7], s[0:1], 8
    s_load_dwordx2 s[12:13], s[0:1], 56
    s_load_dwordx4 s[8:11], s[0:1], 24
""")
    if opt.get("wfirst"):
        a("""
    ; the first sixteen workgroups transpose the weights, the others sort one chunk each
    s_cmp_lt_u32 s2, 16
    s_cselect_b32 s14, 272, 0
    s_add_u32 s2, s2, s14
    s_sub_u32 s2, s2, 16
""")
    a(f"""
    s_cmp_ge_u32 s2, 256
    s_cbranch_scc1 K1_WPREP
""")
    stamp(a, opt, 0, real=True)
    stamp(a, opt, 1)
    a(f"""
    s_mul_i32 s14, s2, {CHUNK * 4}
    v_lshlrev_b32 v3, 4, v0
    v_add_u32 v4, s14, v3
    s_movk_i32 s15, {CHUNK // 4}
    s_cmp_eq_u32 s2, 255
    s_cselect_b32 s15, {(N_EDGES - 255 * CHUNK) // 4}, s15
    v_cmp_gt_u32 vcc, s15, v0
    s_mov_b64 s[32:33], vcc
    v_mov_b32 v7, 0x7ffffff0
    v_cndmask_b32 v4, v7, v4, vcc
    s_waitcnt lgkmcnt(0)
""")
    srd(a, 20, 6, 7, N_EDGES * 4)
    a("    buffer_load_dwordx4 v[8:11], v4, s[20:23], 0 offen")
    srd(a, 16, 4, 5, N_EDGES * 4)
    a("    buffer_load_dwordx4 v[12:15], v4, s[16:19], 0 offen")
    srd(a, 24, 12, 13, WS_SIZE)
    a(f"""
    v_and_b32 v1, 255, v0
    v_lshlrev_b32 v1, 2, v1
    v_mov_b32 v2, 0
    ds_write_b32 v1, v2
    s_and_b32 s28, s2, 7
    s_lshl_b32 s28, s28, 5
    s_lshr_b32 s29, s2, 3
    s_add_u32 s28, s28, s29
    v_mov_b32 v6, 1
    v_and_b32 v48, 63, v0
    v_lshlrev_b32 v48, 4, v48
    v_lshlrev_b32 v63, {2 if opt.get("tabp") else 10}, v0
    s_lshl_b32 s29, s28, {10 if opt.get("tabp") else 2}
    s_add_u32 s29, s29, {hex(TAB_OFF)}
    s_mul_i32 s30, s28, {REC_STRIDE}
    s_waitcnt lgkmcnt(0)
    s_barrier
    s_waitcnt vmcnt(0)
""")
    stamp(a, opt, 2)
    a("    s_mov_b64 exec, s[32:33]")
    for e in range(4):
        a(f"    v_lshlrev_b32_sdwa v{24 + e}, 2, v{8 + e} dst_sel:DWORD dst_unused:UNUSED_PAD src0_sel:DWORD src1_sel:BYTE_0")
        a(f"    ds_add_rtn_u32 v{32 + e}, v{24 + e}, v6")
    for e in range(4):
        a(f"    v_lshrrev_b32 v7, 8, v{8 + e}")
        a(f"    v_lshl_or_b32 v{12 + e}, v7, 24, v{12 + e}")
        a(f"    v_and_b32 v7, 7, v7")
        a(f"    v_lshl_or_b32 v{12 + e}, v7, 20, v{12 + e}")
    a("""
    s_mov_b64 exec, -1
    s_waitcnt lgkmcnt(0)
    s_barrier
""")
    stamp(a, opt, 3)
    a("""
    ds_read_b128 v[52:55], v48
    ds_read_b32 v56, v1
    s_waitcnt lgkmcnt(1)
    v_add_u32 v49, v52, v53
    v_add_u32 v50, v49, v54
    v_add_u32 v57, v50, v55
    v_add_u32 v51, v50, v55
""")
    scan64(a, 57)
    a(f"""
    v_sub_u32 v58, v57, v51
    v_add_u32 v59, v58, v52
    v_add_u32 v60, v58, v49
    v_add_u32 v61, v58, v50
    ds_write_b128 v48, v[58:61] offset:1024
""")
    for e in range(4):
        a(f"    ds_read_b32 v{40 + e}, v{24 + e} offset:1024")
    a(f"""
    ds_read_b32 v62, v1 offset:1024
    s_mov_b64 exec, s[32:33]
    s_waitcnt lgkmcnt(1)
""")
    for e in range(4):
        a(f"    v_add_lshl_u32 v{40 + e}, v{40 + e}, v{32 + e}, 2")
        a(f"    ds_write_b32 v{40 + e}, v{12 + e} offset:2048")
    a(f"""
    s_mov_b64 exec, -1
    v_cmp_gt_u32 vcc, 256, v0
    s_waitcnt lgkmcnt(4)
    v_lshl_or_b32 v62, v56, 16, v62
    s_mov_b64 exec, vcc
    s_cbranch_execz K1_NOTAB
    buffer_store_dword v62, v63, s[24:27], s29 offen
K1_NOTAB:
    s_mov_b64 exec, -1
    s_waitcnt lgkmcnt(0)
    s_barrier
    ds_read_b128 v[8:11], v3 offset:2048
    s_mov_b64 exec, s[32:33]
    s_cbranch_execz K1_D
    s_waitcnt lgkmcnt(0)
    buffer_store_dwordx4 v[8:11], v3, s[24:27], s30 offen{FL[opt.get("rst", 0)]}
K1_D:
    s_mov_b64 exec, -1
""")
    stamp(a, opt, 4)
    if opt.get("diag"):
        a("    s_waitcnt vmcnt(0)")
    stamp(a, opt, 5)
    stamp(a, opt, 6, real=True)
    dump_stamps(a, opt, 7, 12, 13, 7, DIAG_OFF)
    a(f"""
    s_endpgm

K1_WPREP:
    v_cmp_gt_u32 vcc, 256, v0
    s_mov_b64 exec, vcc
    s_cbranch_execz K1_END
    s_sub_u32 s14, s2, 256
    s_lshr_b32 s15, s14, 3
    s_and_b32 s28, s14, 7
    v_and_b32 v1, 15, v0
    v_bfe_u32 v2, v0, 4, 2
    v_lshrrev_b32 v3, 6, v0
    v_lshlrev_b32 v3, 13, v3
    v_lshl_add_u32 v3, v2, 11, v3
    v_lshl_add_u32 v3, v1, 1, v3
    s_lshl_b32 s29, s28, 5
    v_add_u32 v3, s29, v3
    v_lshlrev_b32 v4, 4, v0
    s_lshl_b32 s30, s14, 12
    s_add_u32 s30, s30, {hex(WF_OFF)}
    s_cmp_eq_u32 s15, 0
    s_waitcnt lgkmcnt(0)
    s_cselect_b32 s16, s8, s10
    s_cselect_b32 s17, s9, s11
    s_and_b32 s17, s17, 0xffff
    s_mov_b32 s18, 0x8000
    s_mov_b32 s19, 0x20000
""")
    srd(a, 24, 12, 13, WS_SIZE)
    for j in range(8):
        a(f"    buffer_load_ushort v{8 + j}, v3, s[16:19], 0 offen offset:{j * 256}")
    a("    s_waitcnt vmcnt(0)")
    for j in range(4):
        a(f"    v_lshl_or_b32 v{16 + j}, v{9 + 2 * j}, 16, v{8 + 2 * j}")
    a(f"""
    buffer_store_dwordx4 v[16:19], v4, s[24:27], s30 offen
K1_END:
    s_endpgm
""")


V_IDX = [(2, 4), (116, 118)]
V_COFF = 3
V_SIDX, V_P, V_RA, V_FK, V_NEND = 6, 7, 8, 9, 10
V_QVA, V_QVB = 11, 12
V_SEG = 13
V_PA, V_PB, V_T, V_AP, V_APX = 14, 15, 16, 17, 18
V_REM = 19
V_A = 20
V_D0, V_D1 = 24, 28
V_Q = 32
V_X = 48
V_WV = 96
V_REC = 112
V_GA = 120
V_RA0, V_OOFF, V_GADDR, V_TADDR = 124, 125, 126, 127
V_PM = 88
NS = 4
S_KEY, S_W, S_ROUND = 3, 10, 11
S_XI, S_XR, S_OUT, S_WS = 12, 16, 20, 24
S_S, S_PEND, S_NEND, S_REM = 28, 29, 30, 31
S_M, S_NODE, S_SEL, S_SPLIT, S_T = 32, 34, 35, 36, 37
S_VALID = 38
S_HASB = 43
S_V, S_MORE, S_THR = 47, 46, 48
S_EX = 52
S_E = 42
PT = [1, 3, 5]


def seg_loads(a, tag):
    a(f"""
    buffer_load_dwordx4 {vr(V_REC, 4)}, v{V_SEG}, s[{S_WS}:{S_WS + 3}], 0 offen
""")


def seg_load_b(a, tag):
    a(f"""
    v_cmp_lt_i32 vcc, 16, v{V_REM}
    s_mov_b32 s{S_HASB}, 0
    s_cmp_eq_u64 vcc, 0
    s_cbranch_scc1 K2_NOB_{tag}
    s_mov_b32 s{S_HASB}, 1
    buffer_load_dwordx4 {vr(V_REC + 4, 4)}, v{V_SEG}, s[{S_WS}:{S_WS + 3}], 0 offen offset:64
K2_NOB_{tag}:
""")


def a_setup(a, src):
    a(f"    v_mov_b32_dpp v{V_A + 0}, v{src} quad_perm:[0,1,2,3] row_mask:0xf bank_mask:0x5")
    a(f"    v_mov_b32_dpp v{V_A + 1}, v{src} row_shr:4 row_mask:0xf bank_mask:0xa")
    a(f"    v_mov_b32_dpp v{V_A + 2}, v{src} row_shl:4 row_mask:0xf bank_mask:0x5")
    a(f"    v_mov_b32_dpp v{V_A + 3}, v{src} quad_perm:[0,1,2,3] row_mask:0xf bank_mask:0xa")


def smf(a, X):
    a(f"    v_smfmac_f32_16x16x64_bf16 {vr(V_D0, 4)}, {vr(V_A, 4)}, {vr(X, 8)}, v{V_SIDX}")
    a(f"    v_smfmac_f32_16x16x64_bf16 {vr(V_D1, 4)}, {vr(V_A, 4)}, {vr(X + 8, 8)}, v{V_SIDX}")


def xload(a, X, idx, half):
    if OPT.get("noload"):
        return
    s = f"s[{S_XI}:{S_XI + 3}]"
    fl = ["", " sc0", " sc1", " sc0 sc1"][OPT.get("xfl", 0)]
    a(f"    buffer_load_dwordx4 {vr(X + 4 * half, 4)}, {vr(idx, 2)}, {s}, 0 idxen offen{fl}")
    a(f"    buffer_load_dwordx4 {vr(X + 8 + 4 * half, 4)}, {vr(idx, 2)}, {s}, 0 idxen offen offset:128{fl}")


def qreads(a):
    a(f"    v_xor_b32 v{V_QVA}, v{V_QVA}, v{V_COFF}")
    a(f"    v_xor_b32 v{V_QVB}, v{V_QVB}, v{V_COFF}")
    a(f"    ds_read_b128 {vr(V_Q + 0, 4)}, v{V_QVA} offset:{L_QT}")
    a(f"    ds_read_b128 {vr(V_Q + 4, 4)}, v{V_QVA} offset:{L_QT + 128}")
    a(f"    ds_read_b128 {vr(V_Q + 8, 4)}, v{V_QVB} offset:{L_QT}")
    a(f"    ds_read_b128 {vr(V_Q + 12, 4)}, v{V_QVB} offset:{L_QT + 128}")


def dots(a, X, lo, hi):
    for i in range(lo, hi):
        if OPT.get("nodots"):
            continue
        xa = X + (i if i < 4 else 8 + i - 4)
        xb = X + 4 + (i if i < 4 else 8 + i - 4)
        ca = "0" if i == 0 else f"v{V_PA}"
        cb = "0" if i == 0 else f"v{V_PB}"
        a(f"    v_dot2_f32_bf16 v{V_PA}, v{xa}, v{V_Q + i}, {ca}")
        a(f"    v_dot2_f32_bf16 v{V_PB}, v{xb}, v{V_Q + 8 + i}, {cb}")


def tail_patch(a, npairs_expr_sgpr):
    ia, ib = V_IDX[0]
    a(f"""
    v_lshrrev_b32 v{V_APX}, 3, v1
    s_sub_u32 s41, s40, 8
    s_cselect_b32 s41, 0, s41
    v_cmp_gt_u32 vcc, s40, v{V_APX}
    v_cmp_gt_u32 s[{S_EX}:{S_EX + 1}], s41, v{V_APX}
    s_nop 1
    v_cndmask_b32 v{ia}, v{V_PM}, v{ia}, vcc
    v_cndmask_b32_e64 v{ib}, v{V_PM}, v{ib}, s[{S_EX}:{S_EX + 1}]
""")


def step_early(a, s):
    X = V_X + 16 * s
    XN = V_X + 16 * (1 - s)
    ia, ib = V_IDX[0]
    pos = OPT["early"]
    a(f"""
K2_STEP{s}:
    s_waitcnt vmcnt(0) lgkmcnt(0)
""")

    def loads(tag):
        if OPT.get("tp"):
            a(f"""
    s_cmp_le_u32 s{S_REM}, 1
    s_cbranch_scc1 K2_LAST{s}
K2_LASTB{s}:
""")
        else:
            a(f"""
    s_cmp_eq_u32 s{S_REM}, 0
    s_cbranch_scc1 K2_SKIP{tag}{s}
""")
        xload(a, XN, ia, 0)
        xload(a, XN, ib, 1)
        a(f"""
    ds_read_u16 v{ia}, v{V_RA} offset:{(s + 2) * 64}
    ds_read_u16 v{ib}, v{V_RA} offset:{(s + 2) * 64 + 32}
K2_SKIP{tag}{s}:
""")

    if pos == 1:
        loads("A")
    dots(a, X, 0, 4)
    if pos == 2:
        loads("A")
    dots(a, X, 4, 8)
    if pos == 3:
        loads("A")
    a(f"""
    v_xor_b32 v{V_QVA}, v{V_QVA}, v{V_COFF}
    v_xor_b32 v{V_QVB}, v{V_QVB}, v{V_COFF}
    s_add_u32 s{S_PEND}, s{S_PEND}, 16
    v_permlane32_swap_b32 v{V_PA}, v{V_PB}
    ds_read_b128 {vr(V_Q + 0, 4)}, v{V_QVA} offset:{L_QT}
    ds_read_b128 {vr(V_Q + 4, 4)}, v{V_QVA} offset:{L_QT + 128}
    v_permlane16_swap_b32 v{V_PA}, v{V_PB}
    ds_read_b128 {vr(V_Q + 8, 4)}, v{V_QVB} offset:{L_QT}
    ds_read_b128 {vr(V_Q + 12, 4)}, v{V_QVB} offset:{L_QT + 128}
    v_add_f32_dpp v{V_T}, v{V_PA}, v{V_PA} row_shl:4 row_mask:0xf bank_mask:0x5
    v_add_f32_dpp v{V_T}, v{V_PB}, v{V_PB} row_shr:4 row_mask:0xf bank_mask:0xa
    ds_read_u16 v{V_QVA}, v{V_RA} offset:{(s + 2) * 64 + 2}
    ds_read_u16 v{V_QVB}, v{V_RA} offset:{(s + 2) * 64 + 34}
    v_add_f32_dpp v{V_T}, v{V_T}, v{V_T} quad_perm:[1,0,3,2] row_mask:0xf bank_mask:0xf
    s_nop 1
    v_add_f32_dpp v{V_T}, v{V_T}, v{V_T} quad_perm:[2,3,0,1] row_mask:0xf bank_mask:0xf
    v_exp_f32 v{V_T}, v{V_T}
    s_nop 0
    v_add_f32 v{V_T}, 1.0, v{V_T}
    v_rcp_f32 v{V_T}, v{V_T}
    s_cmp_le_u32 s{S_NEND}, s{S_PEND}
    v_cvt_pk_bf16_f32 v{V_AP}, v{V_T}, 0
    {"s_nop 0" if OPT.get("nobnd") else f"s_cbranch_scc1 K2_BND{s}"}
    s_nop 0
K2_RET{s}:
""")
    if not OPT.get("nopv"):
        a_setup(a, V_AP)
        a("    s_nop 1")
        smf(a, X)
    if pos == 4:
        loads("A")
    if s == 1:
        a(f"    v_add_u32 v{V_RA}, 128, v{V_RA}")
    a(f"""
    s_sub_u32 s{S_REM}, s{S_REM}, 1
    s_cbranch_scc1 K2_LOOP_END
""")
    if OPT.get("prio"):
        a(f"""
    s_cmp_eq_u32 s{S_REM}, s{S_THR}
    s_cbranch_scc1 K2_PRIO{s}
K2_PRIOB{s}:
""")


def step(a, s):
    if OPT.get("early"):
        return step_early(a, s)
    ns = OPT["ns"]
    X = V_X + 16 * s
    ia, ib = V_IDX[0]
    a(f"""
K2_STEP{s}:
    s_cmp_lt_u32 s{S_REM}, {ns - 1}
    s_cbranch_scc1 K2_TAIL{s}
    s_waitcnt vmcnt({4 * (ns - 1)}) lgkmcnt(2)
K2_BACK{s}:
""")
    dots(a, X, 0, 8)
    if OPT.get("fill"):
        a(f"""
    v_xor_b32 v{V_QVA}, v{V_QVA}, v{V_COFF}
    v_xor_b32 v{V_QVB}, v{V_QVB}, v{V_COFF}
    s_add_u32 s{S_PEND}, s{S_PEND}, 16
    v_permlane32_swap_b32 v{V_PA}, v{V_PB}
    ds_read_b128 {vr(V_Q + 0, 4)}, v{V_QVA} offset:{L_QT}
    ds_read_b128 {vr(V_Q + 4, 4)}, v{V_QVA} offset:{L_QT + 128}
    v_permlane16_swap_b32 v{V_PA}, v{V_PB}
    ds_read_b128 {vr(V_Q + 8, 4)}, v{V_QVB} offset:{L_QT}
    ds_read_b128 {vr(V_Q + 12, 4)}, v{V_QVB} offset:{L_QT + 128}
    v_add_f32_dpp v{V_T}, v{V_PA}, v{V_PA} row_shl:4 row_mask:0xf bank_mask:0x5
    v_add_f32_dpp v{V_T}, v{V_PB}, v{V_PB} row_shr:4 row_mask:0xf bank_mask:0xa
    ds_read_u16 v{V_QVA}, v{V_RA} offset:{(s + 2) * 64 + 2}
    ds_read_u16 v{V_QVB}, v{V_RA} offset:{(s + 2) * 64 + 34}
    v_add_f32_dpp v{V_T}, v{V_T}, v{V_T} quad_perm:[1,0,3,2] row_mask:0xf bank_mask:0xf
    s_nop 1
    v_add_f32_dpp v{V_T}, v{V_T}, v{V_T} quad_perm:[2,3,0,1] row_mask:0xf bank_mask:0xf
    v_exp_f32 v{V_T}, v{V_T}
    s_nop 0
    v_add_f32 v{V_T}, 1.0, v{V_T}""")
    else:
        qreads(a)
        a(f"""
    ds_read_u16 v{V_QVA}, v{V_RA} offset:{(s + 2) * 64 + 2}
    ds_read_u16 v{V_QVB}, v{V_RA} offset:{(s + 2) * 64 + 34}
    v_permlane32_swap_b32 v{V_PA}, v{V_PB}
    s_add_u32 s{S_PEND}, s{S_PEND}, 16
    s_nop 0
    v_permlane16_swap_b32 v{V_PA}, v{V_PB}
    s_nop 1
    v_add_f32_dpp v{V_T}, v{V_PA}, v{V_PA} row_shl:4 row_mask:0xf bank_mask:0x5
    v_add_f32_dpp v{V_T}, v{V_PB}, v{V_PB} row_shr:4 row_mask:0xf bank_mask:0xa
    s_nop 1
    v_add_f32_dpp v{V_T}, v{V_T}, v{V_T} quad_perm:[1,0,3,2] row_mask:0xf bank_mask:0xf
    s_nop 1
    v_add_f32_dpp v{V_T}, v{V_T}, v{V_T} quad_perm:[2,3,0,1] row_mask:0xf bank_mask:0xf
    v_exp_f32 v{V_T}, v{V_T}
    s_nop 0
    v_add_f32 v{V_T}, 1.0, v{V_T}""")
    a(f"""
    v_rcp_f32 v{V_T}, v{V_T}
    s_cmp_le_u32 s{S_NEND}, s{S_PEND}
    v_cvt_pk_bf16_f32 v{V_AP}, v{V_T}, 0
    {"s_nop 0" if OPT.get("nobnd") else f"s_cbranch_scc1 K2_BND{s}"}
    s_nop 0
K2_RET{s}:
""")
    if not OPT.get("nopv"):
        a_setup(a, V_AP)
        a("    s_nop 1")
        smf(a, X)
    a(f"""
    s_cmp_lt_u32 s{S_REM}, {ns}
    s_cbranch_scc1 K2_SKIP{s}
    s_waitcnt lgkmcnt(6)
""")
    xload(a, X, ia, 0)
    xload(a, X, ib, 1)
    a(f"""
    ds_read_u16 v{ia}, v{V_RA} offset:{(s + ns + 1) * 64}
    ds_read_u16 v{ib}, v{V_RA} offset:{(s + ns + 1) * 64 + 32}
K2_SKIP{s}:
""")
    if s == ns - 1:
        a(f"    v_add_u32 v{V_RA}, {ns * 64}, v{V_RA}")
    a(f"""
    s_sub_u32 s{S_REM}, s{S_REM}, 1
    s_cbranch_scc1 K2_LOOP_END
""")
    if OPT.get("prio"):
        a(f"""
    s_cmp_eq_u32 s{S_REM}, s{S_THR}
    s_cbranch_scc1 K2_PRIO{s}
K2_PRIOB{s}:
""")


def step_ool(a, s):
    X = V_X + 16 * s
    if not OPT.get("early"):
        a(f"K2_TAIL{s}:")
        for r in range(OPT["ns"] - 2, 0, -1):
            a(f"""
    s_cmp_eq_u32 s{S_REM}, {r}
    s_cbranch_scc0 K2_TAIL{s}_{r}
    s_waitcnt vmcnt({4 * r}) lgkmcnt(0)
    s_branch K2_BACK{s}
K2_TAIL{s}_{r}:
""")
        a(f"""
    s_waitcnt vmcnt(0) lgkmcnt(0)
    s_branch K2_BACK{s}
""")
    a(f"""
""")
    if OPT.get("inl"):
        T0 = V_REC
        a(f"""
K2_BND{s}:
    s_sub_u32 s{S_SPLIT}, s{S_NEND}, s{S_PEND}
    s_add_u32 s{S_SPLIT}, s{S_SPLIT}, 16
    v_cmp_gt_u32 vcc, s{S_SPLIT}, v{V_P}
    s_lshl_b32 s{S_T}, s{S_NODE}, 8
    s_add_u32 s{S_T}, s{S_T}, {L_AGG}
    v_cndmask_b32 v{V_APX}, 0, v{V_AP}, vcc
    v_cndmask_b32_e64 v{V_AP}, v{V_AP}, 0, vcc
    s_and_b32 s40, s{S_NODE}, 15
    s_lshl_b32 s40, s40, 4
""")
        a_setup(a, V_APX)
        a(f"""
    s_or_b32 s{S_T}, s{S_T}, s40
    v_xor_b32 v{V_APX}, s{S_T}, v{V_FK}
""")
        smf(a, X)
        a(f"""
    s_mov_b32 s{S_NEND}, -1
    s_cmp_eq_u64 s[{S_M}:{S_M + 1}], 0
    s_cbranch_scc1 K2_BLAST{s}
    s_ff1_i32_b64 s{S_NODE}, s[{S_M}:{S_M + 1}]
    s_bitset0_b64 s[{S_M}:{S_M + 1}], s{S_NODE}
    v_readlane_b32 s{S_NEND}, v{V_NEND}, s{S_NODE}
    s_nop 2
K2_BFL{s}:
""")
        for i in range(4):
            a(f"    v_permlane32_swap_b32 v{V_D0 + i}, v{V_D1 + i}")
        for i in range(4):
            a(f"    v_add_f32_dpp v{V_D0 + i}, v{V_D1 + i}, v{V_D0 + i} row_shl:8 row_mask:0xf bank_mask:0x3")
        a(f"""
    s_cmp_lg_u32 s{S_ROUND}, 0
    s_cbranch_scc1 K2_BRMW{s}
K2_BPK{s}:
    v_cvt_pk_bf16_f32 v{T0 + 0}, v{V_D0 + 0}, v{V_D0 + 1}
    v_cvt_pk_bf16_f32 v{T0 + 1}, v{V_D0 + 2}, v{V_D0 + 3}
    s_mov_b64 exec, s[{S_VALID}:{S_VALID + 1}]
    ds_write_b64 v{V_APX}, {vr(T0, 2)}
    s_mov_b64 exec, -1
""")
        for i in range(4):
            a(f"    v_mov_b64 {vr(V_D0 + 2 * i, 2)}, 0")
        a(f"""
    s_cmp_le_u32 s{S_NEND}, s{S_PEND}
    s_cbranch_scc0 K2_RET{s}
    s_branch K2_BND{s}
K2_BLAST{s}:
    s_nop 5
    s_branch K2_BFL{s}
K2_BRMW{s}:
    ds_read_b64 {vr(T0, 2)}, v{V_APX}
    s_waitcnt lgkmcnt(0)
    v_lshlrev_b32 v{T0 + 2}, 16, v{T0}
    v_and_b32 v{T0 + 3}, 0xffff0000, v{T0}
    v_add_f32 v{V_D0 + 0}, v{V_D0 + 0}, v{T0 + 2}
    v_add_f32 v{V_D0 + 1}, v{V_D0 + 1}, v{T0 + 3}
    v_lshlrev_b32 v{T0 + 2}, 16, v{T0 + 1}
    v_and_b32 v{T0 + 3}, 0xffff0000, v{T0 + 1}
    v_add_f32 v{V_D0 + 2}, v{V_D0 + 2}, v{T0 + 2}
    v_add_f32 v{V_D0 + 3}, v{V_D0 + 3}, v{T0 + 3}
    s_branch K2_BPK{s}
""")
    else:
        a(f"""
K2_BND{s}:
    s_sub_u32 s{S_SPLIT}, s{S_NEND}, s{S_PEND}
    s_add_u32 s{S_SPLIT}, s{S_SPLIT}, 16
    v_cmp_gt_u32 vcc, s{S_SPLIT}, v{V_P}
    s_mov_b32 s{S_SEL}, {s}
    s_nop 0
    v_cndmask_b32 v{V_APX}, 0, v{V_AP}, vcc
    v_cndmask_b32_e64 v{V_AP}, v{V_AP}, 0, vcc
    s_nop 1
""")
        a_setup(a, V_APX)
        a("    s_nop 1")
        smf(a, X)
        a("    s_branch K2_FLUSH")
    if OPT.get("tp") and OPT.get("early"):
        a(f"""
K2_LAST{s}:
    s_cmp_eq_u32 s{S_REM}, 0
    s_cbranch_scc1 K2_SKIPA{s}
    s_sub_u32 s40, s{S_E}, s{S_PEND}
    s_sub_u32 s40, s40, {16 if OPT["early"] < 3 or True else 0}
""")
        tail_patch(a, None)
        a(f"    s_branch K2_LASTB{s}")
    if OPT.get("prio"):
        a(f"""
K2_PRIO{s}:
    s_cmp_eq_u32 s{S_THR}, {PT[2] - 1}
    s_cbranch_scc0 K2_PRIO{s}_B
    s_setprio 2
    s_mov_b32 s{S_THR}, {PT[1] - 1}
    s_branch K2_PRIOB{s}
K2_PRIO{s}_B:
    s_cmp_eq_u32 s{S_THR}, {PT[1] - 1}
    s_cbranch_scc0 K2_PRIO{s}_C
    s_setprio 1
    s_mov_b32 s{S_THR}, {PT[0] - 1}
    s_branch K2_PRIOB{s}
K2_PRIO{s}_C:
    s_setprio 0
    s_mov_b32 s{S_THR}, -1
    s_branch K2_PRIOB{s}
""")


PARK_N = [0]


def park(a):
    n = PARK_N[0]
    PARK_N[0] += 1
    a(f"""
    s_cmp_lt_u32 s{S_W}, 8
    s_cbranch_scc1 K2_NOPARK{n}
    s_cmp_lg_u32 s{S_ROUND}, 0
    s_cbranch_scc1 K2_NOPARK{n}
    s_and_b32 s40, s{S_W}, 7
    s_lshl_b32 s40, s40, 12
    s_add_u32 s40, s40, {L_WV}
    v_lshlrev_b32 v{V_PA}, 4, v1
    v_add_u32 v{V_PA}, s40, v{V_PA}
""")
    for ks in range(4):
        a(f"    ds_write_b128 v{V_PA}, {vr(V_WV + 4 * ks, 4)} offset:{ks * 1024}")
    a(f"K2_NOPARK{n}:")


def gen_k2(a, opt):
    ws = f"s[{S_WS}:{S_WS + 3}]"
    a(f"""
.globl {MAIN}
.p2align 8
.type {MAIN},@function
{MAIN}:
    s_cmp_ge_u32 s2, 256
    s_cbranch_scc1 K2_END
    s_load_dwordx2 s[8:9], s[0:1], 56
    s_load_dwordx2 s[4:5], s[0:1], 0
    s_load_dwordx2 s[6:7], s[0:1], 40
""")
    stamp(a, opt, 0, real=True)
    stamp(a, opt, 1)
    a(f"""
    v_lshrrev_b32 v1, 6, v0
    s_and_b32 s{S_KEY}, s2, 7
    s_lshl_b32 s{S_KEY}, s{S_KEY}, 5
    v_readfirstlane_b32 s{S_W}, v1
    s_lshr_b32 s40, s2, 3
    s_add_u32 s{S_KEY}, s{S_KEY}, s40
    v_and_b32 v32, 0x3fc, v0
{"    v_lshlrev_b32 v32, 8, v32" if opt.get("tabp") else ""}
    s_lshl_b32 s42, s{S_KEY}, {2 if opt.get("tabp") else 10}
    s_add_u32 s42, s42, {hex(TAB_OFF)}
    s_lshl_b32 s41, s{S_KEY}, 8
    v_lshrrev_b32 v33, 4, v0
    v_and_b32 v34, 15, v0
    v_lshlrev_b32 v35, 16, v33
    v_lshl_or_b32 v35, v34, 4, v35
    v_add_u32 v{V_OOFF}, s41, v35
    s_waitcnt lgkmcnt(0)
""")
    srd(a, S_WS, 8, 9, WS_SIZE)
    a(f"    buffer_load_dword v37, v32, {ws}, s42 offen")
    srd(a, S_XR, 4, 5, N_NODES * 256)
    a(f"""
    buffer_load_dwordx4 v[40:43], v{V_OOFF}, s[{S_XR}:{S_XR + 3}], 0 offen
""")
    if opt.get("spf"):
        nl = opt["spf"]
        a(f"""
    s_cmp_lg_u32 s{S_W}, 15
    s_cbranch_scc1 K2_NOSPF
    s_and_b32 s40, s2, 7
    s_mul_i32 s40, s40, 782
    s_add_u32 s40, s40, {391 + 6400 - 64 * nl}
    s_and_b32 s40, s40, 0xffffff80
    s_max_u32 s40, s40, 6400
    s_sub_u32 s40, s40, 6400
    s_lshr_b32 s46, s2, 3
    s_mul_i32 s46, s46, {8 * REC_STRIDE}
    s_add_u32 s40, s40, s46
    v_and_b32 v38, 63, v0
    v_lshrrev_b32 v39, 3, v38
    v_mul_u32_u24 v39, {REC_STRIDE}, v39
    v_and_b32 v38, 7, v38
    v_lshl_add_u32 v39, v38, 7, v39
    buffer_load_dword v93, v39, {ws}, s40 offen
""")
        if nl == 16:
            a(f"    buffer_load_dword v92, v39, {ws}, s40 offen offset:1024")
        a("K2_NOSPF:")
    a(f"""
    v_and_b32 v1, 63, v0
    v_lshlrev_b32 v36, 4, v1
    s_lshl_b32 s45, s{S_W}, 12
    s_add_u32 s45, s45, {hex(WF_OFF)}
    s_cmp_ge_u32 s{S_W}, 8
    s_cbranch_scc1 K2_NOWQ
""")
    for ks in range(4):
        a(f"    buffer_load_dwordx4 {vr(V_X + 4 * ks, 4)}, v36, {ws}, s45 offen offset:{ks * 1024}")
    a(f"""
K2_NOWQ:
    v_lshrrev_b32 v38, 2, v0
    v_mul_u32_u24 v{V_SEG}, {REC_STRIDE}, v38
    v_and_b32 v44, 3, v0
    v_lshl_add_u32 v{V_SEG}, v44, 4, v{V_SEG}
    v_lshlrev_b32 v{V_REM}, 2, v44
    v_mov_b64 v[44:45], 0
    v_mov_b64 v[46:47], 0
    v_lshlrev_b32 v38, 4, v0
    ds_write_b128 v38, v[44:47] offset:{L_AGG}
    v_and_b32 v39, 127, v0
    v_lshlrev_b32 v39, 2, v39
    ds_write_b32 v39, v44
    v_and_b32 v38, 15, v33
    v_xor_b32 v38, v34, v38
    v_lshlrev_b32 v38, 4, v38
    v_lshl_or_b32 v{V_TADDR}, v33, 8, v38
    s_and_b32 s44, s{S_W}, 7
    v_and_b32 v32, 15, v1
    v_lshrrev_b32 v33, 4, v1
    s_lshl_b32 s49, s44, 1
    v_lshrrev_b32 v38, 1, v33
    v_add_u32 v38, s49, v38
    v_and_b32 v39, 1, v33
    v_lshlrev_b32 v39, 3, v39
    v_lshl_or_b32 v39, v32, 8, v39
    s_cmp_lt_u32 s{S_W}, 8
    s_cselect_b32 s49, 7, 15
    v_and_b32 v34, s49, v32
    v_xor_b32 v38, v38, v34
    v_lshl_or_b32 v{V_GADDR}, v38, 4, v39
    v_xor_b32 v38, v33, v32
    v_lshlrev_b32 v38, 4, v38
    v_lshl_or_b32 v{V_GA}, v32, 8, v38
    v_xor_b32 v{V_GA + 1}, 64, v{V_GA}
    v_xor_b32 v{V_GA + 2}, 0x80, v{V_GA}
    v_xor_b32 v{V_GA + 3}, 0xc0, v{V_GA}
    ; lane constants of the main loop
    v_and_b32 v{V_COFF}, 7, v1
    v_and_b32 v{V_SIDX}, 3, v1
    v_lshlrev_b32 v{V_COFF}, 4, v{V_COFF}
    v_mul_u32_u24 v{V_SIDX}, 0x1111, v{V_SIDX}
    v_mov_b32 v5, v{V_COFF}
    v_lshlrev_b32 v{V_P}, 2, v33
    v_bfe_u32 v39, v1, 2, 1
    v_lshl_add_u32 v{V_P}, v39, 1, v{V_P}
    v_bfe_u32 v39, v1, 3, 1
    v_add_u32 v{V_P}, v39, v{V_P}
    v_lshrrev_b32 v39, 5, v1
    v_lshl_or_b32 v{V_FK}, v39, 7, v{V_COFF}
    v_and_b32 v39, 1, v33
    v_lshl_or_b32 v{V_FK}, v39, 3, v{V_FK}
    v_lshrrev_b32 v{V_RA0}, 3, v1
    v_lshlrev_b32 v{V_RA0}, 2, v{V_RA0}
    v_add_u32 v{V_RA0}, {L_LIST}, v{V_RA0}
    v_mov_b64 {vr(V_A, 2)}, 0
    v_mov_b64 {vr(V_A + 2, 2)}, 0
""")
    srd(a, S_XI, 4, 5, N_NODES, stride=256)
    srd(a, S_OUT, 6, 7, N_NODES * 256)
    a(f"""
    s_mov_b32 s{S_ROUND}, 0
    s_mov_b32 s{S_VALID}, 0x00ff00ff
    s_mov_b32 s{S_VALID + 1}, 0x00ff00ff
    s_and_b32 s{S_V}, s{S_W}, 3
    s_lshl_b32 s{S_V}, s{S_V}, 2
    s_lshr_b32 s40, s{S_W}, 2
    s_add_u32 s{S_V}, s{S_V}, s40
    s_cmp_ge_u32 s{S_W}, 8
    s_cbranch_scc1 K2_TABB
    s_waitcnt vmcnt(5)
    s_branch K2_TABC
K2_TABB:
    s_waitcnt vmcnt({1 + (opt.get("spf", 0) // 8)})
{"    s_cmp_eq_u32 s10, 15" if opt.get("spf") else ""}
{"    s_cbranch_scc1 K2_TABC" if opt.get("spf") else ""}
{"    s_waitcnt vmcnt(1)" if opt.get("spf") else ""}
K2_TABC:
""")
    stamp(a, opt, 2)
    a(f"""
    v_and_b32 v38, 0xffff, v37
    v_lshrrev_b32 v37, 16, v37
    v_lshl_add_u32 v{V_SEG}, v38, 2, v{V_SEG}
    v_sub_u32 v{V_REM}, v37, v{V_REM}
""")
    seg_loads(a, "r0")
    a(f"""
    s_cmp_ge_u32 s{S_W}, 8
    s_cbranch_scc1 K2_XWB
    s_waitcnt vmcnt(5)
    s_branch K2_XWC
K2_XWB:
    s_waitcnt vmcnt({1 + (opt.get("spf", 0) // 8)})
{"    s_cmp_eq_u32 s10, 15" if opt.get("spf") else ""}
{"    s_cbranch_scc1 K2_XWC" if opt.get("spf") else ""}
{"    s_waitcnt vmcnt(1)" if opt.get("spf") else ""}
K2_XWC:
    ds_write_b128 v{V_TADDR}, v[40:43] offset:{L_XT}
""")
    seg_load_b(a, "r0")
    a(f"""
    s_waitcnt lgkmcnt(0)
    s_barrier
""")
    stamp(a, opt, 3)
    a(f"""
    s_cmp_ge_u32 s{S_W}, 8
    s_cbranch_scc1 K2_PF
""")
    B0 = V_X + 16
    QD = [V_D0, V_D1, 40, 44]
    BR = [B0, B0 + 16, B0 + 32, B0]

    def qreads_tile(tt):
        for ks in range(4):
            a(f"    ds_read_b128 {vr(BR[tt] + 4 * ks, 4)}, v{V_GA + ks} offset:{L_XT + tt * 4096}")

    def qmfma(tt):
        for ks in range(4):
            c = "0" if ks == 0 else vr(QD[tt], 4)
            a(f"    v_mfma_f32_16x16x32_bf16 {vr(QD[tt], 4)}, {vr(V_X + 4 * ks, 4)}, {vr(BR[tt] + 4 * ks, 4)}, {c}")

    for tt in range(3):
        qreads_tile(tt)
    a("    s_waitcnt vmcnt(1)")
    a(f"    s_mov_b32 s50, {hex(f32bits(QSCALE))}")
    a(f"    s_mov_b32 s51, s50")
    a("    s_waitcnt lgkmcnt(8)")
    qmfma(0)
    a("    s_waitcnt lgkmcnt(4)")
    qmfma(1)
    qreads_tile(3)
    a("    s_waitcnt lgkmcnt(4)")
    qmfma(2)
    a("    s_waitcnt lgkmcnt(0)")
    qmfma(3)
    for tt in range(4):
        if tt == 3:
            a("    s_nop 1")
        for i in range(2):
            a(f"    v_pk_mul_f32 {vr(QD[tt] + 2 * i, 2)}, {vr(QD[tt] + 2 * i, 2)}, s[50:51]")
        a(f"    v_cvt_pk_bf16_f32 v{80 + 2 * tt}, v{QD[tt]}, v{QD[tt] + 1}")
        a(f"    v_cvt_pk_bf16_f32 v{81 + 2 * tt}, v{QD[tt] + 2}, v{QD[tt] + 3}")
        a(f"    ds_write_b64 v{V_GADDR}, {vr(80 + 2 * tt, 2)} offset:{L_QT + tt * 4096}")
    npf = opt.get("pf2", 0)
    npi = (npf + 7) // 8
    a(f"""
    s_branch K2_PASS1
K2_PF:
""")
    for ks in range(4):
        a(f"    buffer_load_dwordx4 {vr(V_WV + 4 * ks, 4)}, v36, {ws}, s45 offen offset:{ks * 1024}")
    if npf:
        a(f"""
    s_lshr_b32 s40, s2, 3
    s_mul_i32 s40, s40, {782 * 128}
    s_sub_u32 s41, s{S_W}, 8
    s_lshl_b32 s46, s41, 13
    s_add_u32 s40, s40, s46
    s_add_u32 s40, s40, {opt.get("pf", 0) * 256 * 128}
    v_lshlrev_b32 v38, 7, v1
    v_add_u32 v38, s40, v38
""")
        for i in range(npi):
            a(f"""
    s_cmp_lt_u32 s41, {npf - 8 * i}
    s_cselect_b32 s46, 0, 0x40000000
    v_add_u32 v39, s46, v38
    buffer_load_dword v{95 - i}, v39, s[{S_XR}:{S_XR + 3}], 0 offen
""")
            if i + 1 < npi:
                a("    v_add_u32 v38, 0x10000, v38")
    AD, RK, BS = 64, 72, 80
    a(f"""
K2_PASS1:
    v_mov_b32 v{V_T}, 1
    v_lshlrev_b32 v{V_PA}, 2, v1
    v_mov_b32 v{V_APX}, {L_FLAG}
""")
    for pp in range(OPT["ns"] if (OPT["ns"] > 1 and not OPT.get("early")) else 0):
        a(f"    v_mov_b32 v{V_Q + 4 * pp + 1}, v{V_COFF}")
        a(f"    v_mov_b32 v{V_Q + 4 * pp + 3}, v{V_COFF}")
    a(f"""
    s_cmp_lt_u32 s{S_W}, 8
    s_cbranch_scc1 K2_SW_0
    s_cmp_lg_u32 s{S_ROUND}, 0
    s_cbranch_scc1 K2_SW_0
    s_waitcnt vmcnt({4 + npi})
    s_branch K2_SW_1
K2_SW_0:
    s_waitcnt vmcnt(0)
K2_SW_1:
""")
    stamp(a, opt, 4)
    for d in range(4):
        a(f"    v_cmp_lt_i32 s[{S_EX + 2 * d}:{S_EX + 2 * d + 1}], {d}, v{V_REM}")
    for d in range(4):
        a(f"    s_mov_b64 exec, s[{S_EX + 2 * d}:{S_EX + 2 * d + 1}]")
        a(f"    v_lshlrev_b32_sdwa v{AD + d}, 2, v{V_REC + d} dst_sel:DWORD dst_unused:UNUSED_PAD src0_sel:DWORD src1_sel:BYTE_3")
        a(f"    ds_add_rtn_u32 v{RK + d}, v{AD + d}, v{V_T}")
    a(f"""
    s_mov_b64 exec, -1
    s_cmp_eq_u32 s{S_HASB}, 0
    s_cbranch_scc1 K2_P1_NOB
""")
    for d in range(4):
        k = 4 + d
        a(f"    v_cmp_lt_i32 vcc, {16 + d}, v{V_REM}")
        a(f"    s_mov_b64 exec, vcc")
        a(f"    v_lshlrev_b32_sdwa v{AD + k}, 2, v{V_REC + k} dst_sel:DWORD dst_unused:UNUSED_PAD src0_sel:DWORD src1_sel:BYTE_3")
        a(f"    ds_add_rtn_u32 v{RK + k}, v{AD + k}, v{V_T}")
    a(f"""
    s_mov_b64 exec, -1
    v_cmp_lt_i32 vcc, 32, v{V_REM}
    s_cmp_eq_u64 vcc, 0
    s_cbranch_scc1 K2_P1_NOB
    s_mov_b64 exec, vcc
    ds_write_b32 v{V_APX}, v{V_T}
    s_mov_b64 exec, -1
K2_P1_NOB:
    s_waitcnt lgkmcnt(0)
    s_barrier
""")
    stamp(a, opt, 5)
    a(f"""
    ; per-node counts -> positions (lane = node): v_nend = inclusive sum, v_t = exclusive sum
    ds_read_b32 v{V_NEND}, v{V_PA}
    ds_read_b32 v{V_PB}, v{V_PA}
    ds_read_b32 v{V_APX}, v{V_APX}
    s_waitcnt lgkmcnt(0)
    v_readfirstlane_b32 s{S_MORE}, v{V_APX}
""")
    scan64(a, V_NEND)
    a(f"""
    s_nop 0
    v_readlane_b32 s{S_T}, v{V_NEND}, 63
    v_sub_u32 v{V_T}, v{V_NEND}, v{V_PB}
    v_add_u32 v{V_AP}, v{V_T}, v{V_NEND}
    v_cmp_lt_u32 s[{S_M}:{S_M + 1}], 0, v{V_PB}
""")
    for k in range(4):
        a(f"    ds_bpermute_b32 v{BS + k}, v{AD + k}, v{V_T}")
    a(f"""
    s_mul_i32 s40, s{S_V}, s{S_T}
    s_add_u32 s41, s40, s{S_T}
    s_add_u32 s40, s40, 7
    s_lshr_b32 s40, s40, 3
    s_add_u32 s41, s41, 7
    s_lshr_b32 s41, s41, 3
    v_cmp_le_u32 vcc, s40, v{V_AP}
    s_and_b64 s[{S_M}:{S_M + 1}], s[{S_M}:{S_M + 1}], vcc
    v_cmp_gt_u32 vcc, s41, v{V_AP}
    s_and_b64 s[{S_M}:{S_M + 1}], s[{S_M}:{S_M + 1}], vcc
    s_mov_b32 s{S_S}, 0
    s_mov_b32 s{S_REM}, 0
    s_cmp_eq_u64 s[{S_M}:{S_M + 1}], 0
    s_cbranch_scc1 K2_NOWORK_A
    s_ff1_i32_b64 s40, s[{S_M}:{S_M + 1}]
    s_flbit_i32_b64 s41, s[{S_M}:{S_M + 1}]
    s_sub_u32 s41, 63, s41
    v_readlane_b32 s{S_S}, v{V_T}, s40
    v_readlane_b32 s42, v{V_NEND}, s41
K2_NOWORK_A:
    s_waitcnt lgkmcnt(0)
""")
    for d in range(4):
        a(f"    s_mov_b64 exec, s[{S_EX + 2 * d}:{S_EX + 2 * d + 1}]")
        a(f"    v_add_lshl_u32 v{BS + d}, v{BS + d}, v{RK + d}, 2")
        a(f"    ds_write_b32 v{BS + d}, v{V_REC + d} offset:{L_LIST}")
    a(f"""
    s_mov_b64 exec, -1
    s_cmp_eq_u32 s{S_HASB}, 0
    s_cbranch_scc1 K2_P2_NOB
""")
    for k in range(4, 8):
        a(f"    ds_bpermute_b32 v{BS + k}, v{AD + k}, v{V_T}")
    a("    s_waitcnt lgkmcnt(0)")
    for d in range(4):
        k = 4 + d
        a(f"    v_cmp_lt_i32 vcc, {16 + d}, v{V_REM}")
        a(f"    s_mov_b64 exec, vcc")
        a(f"    v_add_lshl_u32 v{BS + k}, v{BS + k}, v{RK + k}, 2")
        a(f"    ds_write_b32 v{BS + k}, v{V_REC + k} offset:{L_LIST}")
    a(f"""
    s_mov_b64 exec, -1
K2_P2_NOB:
    s_cmp_eq_u64 s[{S_M}:{S_M + 1}], 0
    s_cbranch_scc1 K2_NOWORK_B
    s_sub_u32 s{S_REM}, s42, s{S_S}
    s_add_u32 s{S_REM}, s{S_REM}, 15
    s_lshr_b32 s{S_REM}, s{S_REM}, 4
    s_min_u32 s{S_REM}, s{S_REM}, 600
K2_NOWORK_B:
    s_lshl_b32 s40, s{S_S}, 2
    v_add_u32 v{V_RA}, s40, v{V_RA0}
    s_waitcnt lgkmcnt(0)
    s_barrier
""")
    stamp(a, opt, 6)
    if opt.get("diag"):
        a(f"    s_mov_b32 s{S_ST + 24}, s{S_REM}")
    a(f"""
    s_cmp_eq_u32 s{S_REM}, 0
    s_cbranch_scc1 K2_IDLE
""")
    ns = 1 if OPT.get("early") else OPT["ns"]
    PIDX = (lambda pp: (V_Q + 4 * pp, V_Q + 4 * pp + 2)) if ns > 1 else (lambda pp: V_IDX[0])
    for pp in range(ns):
        a(f"    ds_read_u16 v{PIDX(pp)[0]}, v{V_RA} offset:{pp * 64}")
        a(f"    ds_read_u16 v{PIDX(pp)[1]}, v{V_RA} offset:{pp * 64 + 32}")
    a(f"    ds_read_u16 v{V_QVA}, v{V_RA} offset:2")
    a(f"    ds_read_u16 v{V_QVB}, v{V_RA} offset:34")
    if OPT.get("tp"):
        a(f"""
    v_mov_b32 v{V_PM}, 0xffff
    s_cmp_eq_u32 s{S_REM}, 1
    s_cbranch_scc0 K2_PRO_FULL
    s_sub_u32 s40, s{S_E}, s{S_S}
    s_waitcnt lgkmcnt(2)
""")
        tail_patch(a, None)
        a("K2_PRO_FULL:")
    if OPT.get("prio"):
        a("    s_setprio 3")
    if ns == 4:
        park(a)
    for pp in range(ns):
        if pp > 0:
            a(f"    s_cmp_le_u32 s{S_REM}, {pp}")
            a(f"    s_cbranch_scc1 K2_PRO_DONE")
        a(f"    s_waitcnt lgkmcnt({min(15, 2 * (ns - pp))})" if ns < 4 else ("    s_waitcnt lgkmcnt(0)" if pp == 0 else ""))
        xload(a, V_X + 16 * pp, PIDX(pp)[0], 0)
        xload(a, V_X + 16 * pp, PIDX(pp)[1], 1)
        if OPT.get("prio") and pp < 2:
            a(f"    s_setprio {max(0, 1 - pp)}")
    a(f"""
K2_PRO_DONE:
    s_waitcnt lgkmcnt(0)
""")
    qreads(a)
    a(f"""
    ds_read_u16 v{V_QVA}, v{V_RA} offset:{64 + 2}
    ds_read_u16 v{V_QVB}, v{V_RA} offset:{64 + 34}
    ds_read_u16 v{V_IDX[0][0]}, v{V_RA} offset:{ns * 64}
    ds_read_u16 v{V_IDX[0][1]}, v{V_RA} offset:{ns * 64 + 32}
    s_sub_u32 s{S_REM}, s{S_REM}, 1
    s_mov_b32 s{S_PEND}, s{S_S}
    s_mov_b32 s{S_SEL}, {OPT["ns"]}
""")
    if OPT.get("prio"):
        a(f"""
    s_mov_b32 s{S_THR}, -1
    s_setprio 0
    s_cmp_lt_u32 s{S_REM}, {PT[0]}
    s_cbranch_scc1 K2_PRIO_SET
    s_mov_b32 s{S_THR}, {PT[0] - 1}
    s_setprio 1
    s_cmp_lt_u32 s{S_REM}, {PT[1]}
    s_cbranch_scc1 K2_PRIO_SET
    s_mov_b32 s{S_THR}, {PT[1] - 1}
    s_setprio 2
    s_cmp_lt_u32 s{S_REM}, {PT[2]}
    s_cbranch_scc1 K2_PRIO_SET
    s_mov_b32 s{S_THR}, {PT[2] - 1}
    s_setprio 3
K2_PRIO_SET:
""")
    if OPT.get("inl"):
        a(f"""
    s_ff1_i32_b64 s{S_NODE}, s[{S_M}:{S_M + 1}]
    s_bitset0_b64 s[{S_M}:{S_M + 1}], s{S_NODE}
    v_readlane_b32 s{S_NEND}, v{V_NEND}, s{S_NODE}
""")
        for i in range(4):
            a(f"    v_mov_b64 {vr(V_D0 + 2 * i, 2)}, 0")
        a("K2_LOOP:")
    else:
        a(f"""
    s_branch K2_NEXTNODE
K2_LOOP:
""")
    NS = OPT["ns"]
    for s in range(NS):
        step(a, s)
    a("    s_branch K2_STEP0")
    for s in range(NS):
        step_ool(a, s)
    a("K2_IDLE:")
    if NS == 4:
        park(a)
    a("    s_branch K2_LOOP_END")

    if not OPT.get("inl"):
        T0 = V_REC
        a(f"""
K2_FLUSH:
    s_lshl_b32 s{S_T}, s{S_NODE}, 8
    s_add_u32 s{S_T}, s{S_T}, {L_AGG}
    s_and_b32 s40, s{S_NODE}, 15
    s_lshl_b32 s40, s40, 4
    s_or_b32 s{S_T}, s{S_T}, s40
    v_xor_b32 v{V_APX}, s{S_T}, v{V_FK}
    s_nop 3
""")
        for i in range(4):
            a(f"    v_permlane32_swap_b32 v{V_D0 + i}, v{V_D1 + i}")
        for i in range(4):
            a(f"    v_add_f32_dpp v{V_D0 + i}, v{V_D1 + i}, v{V_D0 + i} row_shl:8 row_mask:0xf bank_mask:0x3")
        a(f"""
    s_cmp_lg_u32 s{S_ROUND}, 0
    s_cbranch_scc1 K2_FLUSH_RMW
K2_FLUSH_PACK:
    v_cvt_pk_bf16_f32 v{T0 + 0}, v{V_D0 + 0}, v{V_D0 + 1}
    v_cvt_pk_bf16_f32 v{T0 + 1}, v{V_D0 + 2}, v{V_D0 + 3}
    s_mov_b64 exec, s[{S_VALID}:{S_VALID + 1}]
    ds_write_b64 v{V_APX}, {vr(T0, 2)}
    s_mov_b64 exec, -1
K2_NEXTNODE:
    s_mov_b32 s{S_NEND}, -1
    s_cmp_eq_u64 s[{S_M}:{S_M + 1}], 0
    s_cbranch_scc1 K2_FLUSH_RET
    s_ff1_i32_b64 s{S_NODE}, s[{S_M}:{S_M + 1}]
    s_bitset0_b64 s[{S_M}:{S_M + 1}], s{S_NODE}
    v_readlane_b32 s{S_NEND}, v{V_NEND}, s{S_NODE}
""")
        for i in range(4):
            a(f"    v_mov_b64 {vr(V_D0 + 2 * i, 2)}, 0")
        a(f"""
    s_cmp_le_u32 s{S_NEND}, s{S_PEND}
    s_cbranch_scc1 K2_FLUSH_AGAIN
K2_FLUSH_RET:
""")
        for s in range(NS):
            a(f"    s_cmp_eq_u32 s{S_SEL}, {s}")
            a(f"    s_cbranch_scc1 K2_RET{s}")
        a("    s_branch K2_LOOP")
        a("K2_FLUSH_AGAIN:")
        for s in range(NS - 1):
            a(f"    s_cmp_eq_u32 s{S_SEL}, {s}")
            a(f"    s_cbranch_scc1 K2_BND{s}")
        a(f"    s_branch K2_BND{NS - 1}")
        a(f"""
K2_FLUSH_RMW:
    ds_read_b64 {vr(T0, 2)}, v{V_APX}
    s_waitcnt lgkmcnt(0)
    v_lshlrev_b32 v{T0 + 2}, 16, v{T0}
    v_and_b32 v{T0 + 3}, 0xffff0000, v{T0}
    v_add_f32 v{V_D0 + 0}, v{V_D0 + 0}, v{T0 + 2}
    v_add_f32 v{V_D0 + 1}, v{V_D0 + 1}, v{T0 + 3}
    v_lshlrev_b32 v{T0 + 2}, 16, v{T0 + 1}
    v_and_b32 v{T0 + 3}, 0xffff0000, v{T0 + 1}
    v_add_f32 v{V_D0 + 2}, v{V_D0 + 2}, v{T0 + 2}
    v_add_f32 v{V_D0 + 3}, v{V_D0 + 3}, v{T0 + 3}
    s_branch K2_FLUSH_PACK
""")
    a(f"""
K2_LOOP_END:
""")
    if OPT.get("prio"):
        a("    s_setprio 0")
    a(f"""
    s_cmp_lg_u32 s{S_MORE}, 0
    s_cbranch_scc1 K2_MORE
""")
    if NS == 4:
        a(f"""
    s_cmp_lt_u32 s{S_W}, 8
    s_cbranch_scc1 K2_NOFETCH
    s_and_b32 s40, s{S_W}, 7
    s_lshl_b32 s40, s40, 12
    s_add_u32 s40, s40, {L_WV}
    v_lshlrev_b32 v{V_PA}, 4, v1
    v_add_u32 v{V_PA}, s40, v{V_PA}
""")
        for ks in range(4):
            a(f"    ds_read_b128 {vr(V_WV + 4 * ks, 4)}, v{V_PA} offset:{ks * 1024}")
    a(f"""
K2_NOFETCH:
    s_waitcnt vmcnt(0) lgkmcnt(0)
""")
    stamp(a, opt, 7)
    a(f"""
    s_barrier
""")
    stamp(a, opt, 8)
    a(f"""
    s_cmp_lt_u32 s{S_W}, 8
    s_cbranch_scc1 K2_EPI_WAIT
""")
    EB = V_Q
    ED = [V_D0, V_D1, V_REC, V_REC + 4]
    for tt in range(4):
        for ks in range(4):
            a(f"    ds_read_b128 {vr(EB + (tt * 4 + ks) * 4, 4)}, v{V_GA + ks} offset:{L_AGG + tt * 4096}")
    for tt in range(4):
        a(f"    s_waitcnt lgkmcnt({4 * (3 - tt)})")
        for ks in range(4):
            c = "0" if ks == 0 else vr(ED[tt], 4)
            a(f"    v_mfma_f32_16x16x32_bf16 {vr(ED[tt], 4)}, {vr(V_WV + 4 * ks, 4)}, {vr(EB + (tt * 4 + ks) * 4, 4)}, {c}")
    a("    s_nop 3")
    for tt in range(4):
        if tt == 3:
            a("    s_nop 3")
        a(f"    v_cvt_pk_bf16_f32 v{16 + 2 * tt}, v{ED[tt]}, v{ED[tt] + 1}")
        a(f"    v_cvt_pk_bf16_f32 v{17 + 2 * tt}, v{ED[tt] + 2}, v{ED[tt] + 3}")
        a(f"    ds_write_b64 v{V_GADDR}, {vr(16 + 2 * tt, 2)} offset:{L_XT + tt * 4096}")
    a(f"""
K2_EPI_WAIT:
    s_waitcnt lgkmcnt(0)
    s_barrier
    ds_read_b128 v[40:43], v{V_TADDR} offset:{L_XT}
    s_waitcnt lgkmcnt(0)
    buffer_store_dwordx4 v[40:43], v{V_OOFF}, s[{S_OUT}:{S_OUT + 3}], 0 offen{FL[opt.get("ost", 2)]}
""")
    stamp(a, opt, 9)
    if opt.get("diag"):
        a("    s_waitcnt vmcnt(0)")
    stamp(a, opt, 10)
    stamp(a, opt, 11, real=True)
    dump_stamps(a, opt, 13, 8, 9, NW, DIAG_OFF + 0x100000)
    a(f"""
    s_endpgm

K2_MORE:
    s_waitcnt vmcnt(0) lgkmcnt(0)
    s_barrier
    s_add_u32 s{S_ROUND}, s{S_ROUND}, 1
    v_and_b32 v39, 127, v0
    v_lshlrev_b32 v39, 2, v39
    v_mov_b32 v38, 0
    ds_write_b32 v39, v38
    v_add_u32 v{V_SEG}, 128, v{V_SEG}
    v_subrev_u32 v{V_REM}, 32, v{V_REM}
""")
    seg_loads(a, "rn")
    seg_load_b(a, "rn")
    a(f"""
    s_waitcnt lgkmcnt(0)
    s_barrier
    s_branch K2_PASS1
K2_END:
    s_endpgm
""")


HEADER = f"""; Kernarg layout for this problem (64 bytes, ptrs only, base s[0:1]):
;
;
; @launch kernel={K1} grid=(272,1,1) block=(256,1,1) lds=8320
; @launch kernel={MAIN} grid=(256,1,1) block=({NW * 64},1,1) lds=@LDS@
.amdgcn_target "amdgcn-amd-amdhsa--gfx950"
.text
"""


def kd(name, vgpr, sgpr):
    acc = (vgpr + 3) // 4 * 4
    return f"""
.p2align 6
.amdhsa_kernel {name}
  .amdhsa_next_free_vgpr {vgpr}
  .amdhsa_next_free_sgpr {sgpr}
  .amdhsa_accum_offset {acc}
  .amdhsa_group_segment_fixed_size 0
  .amdhsa_kernarg_size 64
  .amdhsa_user_sgpr_count 2
  .amdhsa_user_sgpr_kernarg_segment_ptr 1
  .amdhsa_system_sgpr_workgroup_id_x 1
  .amdhsa_float_denorm_mode_32 3
.end_amdhsa_kernel
"""


def generate(opt=None):
    opt = opt or {}
    OPT.clear()
    OPT.update(opt)
    OPT.setdefault("early", 3)
    OPT.setdefault("tp", 0)
    OPT.setdefault("ns", 2 if OPT.get("early") else 1)
    OPT.setdefault("prio", 1)
    OPT.setdefault("pf2", 5)
    OPT.setdefault("k1w", 1)
    OPT.setdefault("inl", 1)
    OPT.setdefault("wfirst", 1)
    opt = dict(OPT)
    PARK_N[0] = 0
    if "pt" in opt:
        v = opt["pt"]
        PT[:] = [v // 100, (v // 10) % 10, v % 10]
    a = Asm()
    hdr = HEADER.replace("@LDS@", str(L_END if OPT["ns"] == 4 else L_WV))
    if opt.get("k1w"):
        hdr = hdr.replace("grid=(272,1,1) block=(256,1,1) lds=8320", "grid=(272,1,1) block=(448,1,1) lds=9216")
    a(hdr)
    (gen_k1_wide if opt.get("k1w") else gen_k1)(a, opt)
    gen_k2(a, opt)
    a('.section .rodata,"a"')
    sg = 96 if opt.get("diag") else 64
    a(kd(K1, 80, sg))
    a(kd(MAIN, 128, sg))
    return "\n".join(ln for ln in a.text().split("\n") if ln.strip()) + "\n"


if __name__ == "__main__":
    out = sys.argv[1] if len(sys.argv) > 1 else "gather_scatter__kernel_systems_refs_featgraph__graph.s"
    opt = {}
    for kv in sys.argv[2:]:
        k, _, v = kv.partition("=")
        opt[k] = int(v) if v else 1
    open(out, "w").write(generate(opt))
    print("wrote", out)
```

```python
import math
import sys

OPT = {}
FL = ["", " sc1", " nt", " sc0 sc1", " sc0 sc1 nt"]
MAIN = "gather_scatter__kernel_systems_refs_featgraph__graph_kernel"
K1 = "gs_bucket_kernel"

N_NODES = 12500
N_EDGES = 400000
CHUNK = 1564
REC_STRIDE = 6400
REC_OFF = 0
TAB_OFF = 0x190000
WF_OFF = 0x1D0000
WS_SIZE = 0x1E0000

L_CNT = 0
L_FLAG = 256
L_AGG = 1024
L_QT = 17408
L_XT = 33792
L_LIST = 50176
L_WV = 84224
L_END = 116992

NW = 16
P = 3

QSCALE = -math.log2(math.e) / math.sqrt(128.0)


def f32bits(x):
    import struct
    return struct.unpack("<I", struct.pack("<f", x))[0]


class Asm:
    def __init__(self):
        self.lines = []

    def __call__(self, text=""):
        for ln in text.strip("\n").split("\n"):
            self.lines.append(ln.rstrip())

    def text(self):
        return "\n".join(self.lines) + "\n"


def vr(a, n):
    return f"v[{a}:{a + n - 1}]"


def srd(a, dst, lo, hi, nrec, stride=0):
    a(f"    s_mov_b32 s{dst}, s{lo}")
    a(f"    s_and_b32 s{dst + 1}, s{hi}, 0xffff")
    if stride:
        a(f"    s_or_b32 s{dst + 1}, s{dst + 1}, {hex(stride << 16)}")
    a(f"    s_mov_b32 s{dst + 2}, {hex(nrec)}")
    a(f"    s_mov_b32 s{dst + 3}, 0x20000")


DIAG_OFF = 0x400000
S_ST = 60


def stamp(a, opt, i, real=False):
    if not opt.get("diag"):
        return
    op = "s_memrealtime" if real else "s_memtime"
    a(f"    {op} s[{S_ST + 2 * i}:{S_ST + 2 * i + 1}]")
    a("    s_waitcnt lgkmcnt(0)")


def dump_stamps(a, opt, n, ptr_lo, ptr_hi, waves_per_wg, base):
    if not opt.get("diag"):
        return
    a(f"    s_mov_b32 s52, s{ptr_lo}")
    a(f"    s_and_b32 s53, s{ptr_hi}, 0xffff")
    a(f"    s_mov_b32 s54, 0x1000000")
    a(f"    s_mov_b32 s55, 0x20000")
    a(f"    v_mov_b32 v2, 0")
    for i in range(n):
        a(f"    v_writelane_b32 v2, s{S_ST + 2 * i}, {i}")
    a(f"    v_lshrrev_b32 v3, 6, v0")
    a(f"    s_mul_i32 s56, s2, {waves_per_wg}")
    a(f"    v_add_u32 v3, s56, v3")
    a(f"    v_lshlrev_b32 v3, 6, v3")
    a(f"    v_and_b32 v4, 63, v0")
    a(f"    v_lshl_add_u32 v3, v4, 2, v3")
    a(f"    v_add_u32 v3, {hex(base)}, v3")
    a(f"    s_mov_b64 exec, 0xffff")
    a(f"    buffer_store_dword v2, v3, s[52:55], 0 offen")
    a(f"    s_mov_b64 exec, -1")


def scan64(a, reg):
    for ctl in ("row_shr:1", "row_shr:2", "row_shr:4", "row_shr:8"):
        a(f"    s_nop 1")
        a(f"    v_add_u32_dpp v{reg}, v{reg}, v{reg} {ctl} row_mask:0xf bank_mask:0xf bound_ctrl:1")
    a(f"    s_nop 1")
    a(f"    v_add_u32_dpp v{reg}, v{reg}, v{reg} row_bcast:15 row_mask:0xa bank_mask:0xf")
    a(f"    s_nop 1")
    a(f"    v_add_u32_dpp v{reg}, v{reg}, v{reg} row_bcast:31 row_mask:0xc bank_mask:0xf")


def k1_prefetch(a, opt, where):
    if opt.get("pfpos", 0) != where:
        return
    n = opt.get("pf", 0)
    if n:
        srd(a, 40, 34, 35, N_NODES * 256)
        a(f"""
    s_lshr_b32 s38, s2, 3
    s_mul_i32 s38, s38, {782 * 128}
    v_lshlrev_b32 v64, 7, v0
    v_add_u32 v64, s38, v64
""")
        for i in range(n):
            if i:
                a(f"    v_add_u32 v64, 0x8000, v64")
            if i == 3:
                a(f"    v_cmp_gt_u32 vcc, {782 - 768}, v0")
                a(f"    s_mov_b64 exec, vcc")
                a(f"    s_cbranch_execz K1_PF_DONE")
            a(f"    buffer_load_dword v{65 + i}, v64, s[40:43], 0 offen")
        if n > 3:
            a("K1_PF_DONE:")
            a("    s_mov_b64 exec, -1")
    if opt.get("pfm"):
        srd(a, 40, 34, 35, N_NODES * 256)
        a(f"""
    s_mul_i32 s38, s2, {98 * 128}
    v_lshlrev_b32 v64, 7, v0
    v_add_u32 v64, s38, v64
    v_mov_b32 v66, 0x7ffffff0
    v_cmp_gt_u32 vcc, 98, v0
    s_nop 1
    v_cndmask_b32 v64, v66, v64, vcc
    buffer_load_dword v65, v64, s[40:43], 0 offen
""")
    if opt.get("codepf"):
        a(f"""
    s_getpc_b64 s[44:45]
K1_PC:
    s_add_u32 s44, s44, {MAIN}-K1_PC
    s_addc_u32 s45, s45, 0
    v_and_b32 v70, 63, v0
    v_lshlrev_b32 v70, 7, v70
    v_min_u32 v70, K2_END-{MAIN}, v70
    global_load_dword v71, v70, s[44:45]
""")
    if opt.get("touch"):
        srd(a, 40, 36, 37, N_NODES * 256)
        a(f"""
    v_and_b32 v72, 1, v0
    v_lshlrev_b32 v72, 21, v72
    buffer_load_dword v73, v72, s[40:43], 0 offen
""")
        srd(a, 40, 34, 35, N_NODES * 256)
        a(f"""
    buffer_load_dword v74, v72, s[40:43], 0 offen
""")

def gen_k1(a, opt):
    a(f"""
.globl {K1}
.p2align 8
.type {K1},@function
{K1}:
    s_cmp_ge_u32 s2, 272
    s_cbranch_scc1 K1_END
    s_load_dwordx4 s[4:7], s[0:1], 8
    s_load_dwordx4 s[8:11], s[0:1], 24
    s_load_dwordx2 s[12:13], s[0:1], 56
    s_load_dwordx2 s[34:35], s[0:1], 0
    s_load_dwordx2 s[36:37], s[0:1], 40
    s_cmp_ge_u32 s2, 256
    s_cbranch_scc1 K1_WPREP
""")
    stamp(a, opt, 0, real=True)
    stamp(a, opt, 1)
    a(f"""
    v_lshlrev_b32 v1, 2, v0
    v_mov_b32 v2, 0
    ds_write_b32 v1, v2
    s_mul_i32 s14, s2, {CHUNK * 4}
    v_lshlrev_b32 v3, 4, v0
    v_add_u32 v4, s14, v3
    v_add_u32 v5, 0x1000, v4
    s_movk_i32 s15, {(CHUNK - 1024) // 4}
    s_cmp_eq_u32 s2, 255
    s_cselect_b32 s15, {(N_EDGES - 255 * CHUNK - 1024) // 4}, s15
    s_and_b32 s28, s2, 7
    s_lshl_b32 s28, s28, 5
    s_lshr_b32 s29, s2, 3
    s_add_u32 s28, s28, s29
    v_mov_b32 v6, 1
    v_cmp_gt_u32 vcc, s15, v0
    s_mov_b64 s[32:33], vcc
    s_waitcnt lgkmcnt(0)
""")
    srd(a, 16, 4, 5, N_EDGES * 4)
    srd(a, 20, 6, 7, N_EDGES * 4)
    srd(a, 24, 12, 13, WS_SIZE)
    a(f"""
    buffer_load_dwordx4 v[8:11], v4, s[20:23], 0 offen
    buffer_load_dwordx4 v[12:15], v4, s[16:19], 0 offen
    s_mov_b64 exec, s[32:33]
    s_cbranch_execz K1_A
    buffer_load_dwordx4 v[16:19], v5, s[20:23], 0 offen
    buffer_load_dwordx4 v[20:23], v5, s[16:19], 0 offen
K1_A:
    s_mov_b64 exec, -1
""")
    npf0 = 0
    if opt.get("pfpos", 0) == 0:
        npf0 = opt.get("pf", 0) + (1 if opt.get("codepf") else 0) + (2 if opt.get("touch") else 0) + (1 if opt.get("pfm") else 0)
    k1_prefetch(a, opt, 0)
    if npf0 and opt.get("pf", 0) > 3:
        npf0 -= 1
    a(f"""
    s_barrier
    s_waitcnt vmcnt({npf0})
""")
    k1_prefetch(a, opt, 1)
    stamp(a, opt, 2)

    def edges(dbase, sbase, abase, rbase):
        for e in range(4):
            a(f"    v_lshlrev_b32_sdwa v{abase + e}, 2, v{dbase + e} dst_sel:DWORD dst_unused:UNUSED_PAD src0_sel:DWORD src1_sel:BYTE_0")
            a(f"    ds_add_rtn_u32 v{rbase + e}, v{abase + e}, v6")
        for e in range(4):
            a(f"    v_lshrrev_b32 v7, 8, v{dbase + e}")
            a(f"    v_lshl_or_b32 v{sbase + e}, v7, 24, v{sbase + e}")
            a(f"    v_and_b32 v7, 7, v7")
            a(f"    v_lshl_or_b32 v{sbase + e}, v7, 20, v{sbase + e}")

    edges(8, 12, 24, 32)
    a("""
    s_mov_b64 exec, s[32:33]
    s_cbranch_execz K1_B
""")
    edges(16, 20, 28, 36)
    a("""
K1_B:
    s_mov_b64 exec, -1
    s_waitcnt lgkmcnt(0)
    s_barrier
""")
    stamp(a, opt, 3)
    a("""
    v_and_b32 v48, 63, v0
    v_lshlrev_b32 v48, 4, v48
    ds_read_b128 v[52:55], v48
    ds_read_b32 v56, v1
    s_waitcnt lgkmcnt(0)
    v_add_u32 v49, v52, v53
    v_add_u32 v50, v49, v54
    v_add_u32 v51, v50, v55
    v_mov_b32 v57, v51
""")
    scan64(a, 57)
    a(f"""
    v_sub_u32 v58, v57, v51
    v_add_u32 v59, v58, v52
    v_add_u32 v60, v58, v49
    v_add_u32 v61, v58, v50
    ds_write_b128 v48, v[58:61] offset:1024
""")
    for e in range(4):
        a(f"    ds_read_b32 v{40 + e}, v{24 + e} offset:1024")
    a("    ds_read_b32 v62, v1 offset:1024")
    a("""
    s_mov_b64 exec, s[32:33]
    s_cbranch_execz K1_C
""")
    for e in range(4):
        a(f"    ds_read_b32 v{44 + e}, v{28 + e} offset:1024")
    a("    s_waitcnt lgkmcnt(0)")
    for e in range(4):
        a(f"    v_add_lshl_u32 v{44 + e}, v{44 + e}, v{36 + e}, 2")
        a(f"    ds_write_b32 v{44 + e}, v{20 + e} offset:2048")
    a("""
K1_C:
    s_mov_b64 exec, -1
    s_waitcnt lgkmcnt(0)
""")
    for e in range(4):
        a(f"    v_add_lshl_u32 v{40 + e}, v{40 + e}, v{32 + e}, 2")
        a(f"    ds_write_b32 v{40 + e}, v{12 + e} offset:2048")
    a(f"""
    v_lshl_or_b32 v62, v56, 16, v62
    v_lshlrev_b32 v63, 10, v0
    s_lshl_b32 s29, s28, 2
    s_add_u32 s29, s29, {hex(TAB_OFF)}
    buffer_store_dword v62, v63, s[24:27], s29 offen
    s_mul_i32 s30, s28, {REC_STRIDE}
    v_add_u32 v5, 0x1000, v3
    s_waitcnt lgkmcnt(0)
    s_barrier
    ds_read_b128 v[8:11], v3 offset:2048
    s_mov_b64 exec, s[32:33]
    s_cbranch_execz K1_D
    ds_read_b128 v[12:15], v3 offset:6144
    s_waitcnt lgkmcnt(0)
    buffer_store_dwordx4 v[12:15], v5, s[24:27], s30 offen{FL[opt.get("rst", 0)]}
K1_D:
    s_mov_b64 exec, -1
    s_waitcnt lgkmcnt(0)
    buffer_store_dwordx4 v[8:11], v3, s[24:27], s30 offen{FL[opt.get("rst", 0)]}
""")
    stamp(a, opt, 4)
    if opt.get("diag"):
        a("    s_waitcnt vmcnt(0)")
    stamp(a, opt, 5)
    stamp(a, opt, 6, real=True)
    dump_stamps(a, opt, 7, 12, 13, 4, DIAG_OFF)
    a(f"""
    s_endpgm

K1_WPREP:
    s_sub_u32 s14, s2, 256
    s_lshr_b32 s15, s14, 3
    s_and_b32 s28, s14, 7
    v_and_b32 v1, 15, v0
    v_bfe_u32 v2, v0, 4, 2
    v_lshrrev_b32 v3, 6, v0
    v_lshlrev_b32 v3, 13, v3
    v_lshl_add_u32 v3, v2, 11, v3
    v_lshl_add_u32 v3, v1, 1, v3
    s_lshl_b32 s29, s28, 5
    v_add_u32 v3, s29, v3
    v_lshlrev_b32 v4, 4, v0
    s_lshl_b32 s30, s14, 12
    s_add_u32 s30, s30, {hex(WF_OFF)}
    s_cmp_eq_u32 s15, 0
    s_waitcnt lgkmcnt(0)
    s_cselect_b32 s16, s8, s10
    s_cselect_b32 s17, s9, s11
    s_and_b32 s17, s17, 0xffff
    s_mov_b32 s18, 0x8000
    s_mov_b32 s19, 0x20000
""")
    srd(a, 24, 12, 13, WS_SIZE)
    for j in range(8):
        a(f"    buffer_load_ushort v{8 + j}, v3, s[16:19], 0 offen offset:{j * 256}")
    a("    s_waitcnt vmcnt(0)")
    for j in range(4):
        a(f"    v_lshl_or_b32 v{16 + j}, v{9 + 2 * j}, 16, v{8 + 2 * j}")
    a(f"""
    buffer_store_dwordx4 v[16:19], v4, s[24:27], s30 offen
K1_END:
    s_endpgm
""")


def gen_k1_wide(a, opt):
    a(f"""
.globl {K1}
.p2align 8
.type {K1},@function
{K1}:
    s_cmp_ge_u32 s2, 272
    s_cbranch_scc1 K1_END
    s_load_dwordx4 s[4:7], s[0:1], 8
    s_load_dwordx2 s[12:13], s[0:1], 56
    s_load_dwordx4 s[8:11], s[0:1], 24
""")
    if opt.get("wfirst"):
        a("""
    ; the first sixteen workgroups transpose the weights, the others sort one chunk each
    s_cmp_lt_u32 s2, 16
    s_cselect_b32 s14, 272, 0
    s_add_u32 s2, s2, s14
    s_sub_u32 s2, s2, 16
""")
    a(f"""
    s_cmp_ge_u32 s2, 256
    s_cbranch_scc1 K1_WPREP
""")
    stamp(a, opt, 0, real=True)
    stamp(a, opt, 1)
    a(f"""
    s_mul_i32 s14, s2, {CHUNK * 4}
    v_lshlrev_b32 v3, 4, v0
    v_add_u32 v4, s14, v3
    s_movk_i32 s15, {CHUNK // 4}
    s_cmp_eq_u32 s2, 255
    s_cselect_b32 s15, {(N_EDGES - 255 * CHUNK) // 4}, s15
    v_cmp_gt_u32 vcc, s15, v0
    s_mov_b64 s[32:33], vcc
    v_mov_b32 v7, 0x7ffffff0
    v_cndmask_b32 v4, v7, v4, vcc
    s_waitcnt lgkmcnt(0)
""")
    srd(a, 20, 6, 7, N_EDGES * 4)
    a("    buffer_load_dwordx4 v[8:11], v4, s[20:23], 0 offen")
    srd(a, 16, 4, 5, N_EDGES * 4)
    a("    buffer_load_dwordx4 v[12:15], v4, s[16:19], 0 offen")
    srd(a, 24, 12, 13, WS_SIZE)
    a(f"""
    v_and_b32 v1, 255, v0
    v_lshlrev_b32 v1, 2, v1
    v_mov_b32 v2, 0
    ds_write_b32 v1, v2
    s_and_b32 s28, s2, 7
    s_lshl_b32 s28, s28, 5
    s_lshr_b32 s29, s2, 3
    s_add_u32 s28, s28, s29
    v_mov_b32 v6, 1
    v_and_b32 v48, 63, v0
    v_lshlrev_b32 v48, 4, v48
    v_lshlrev_b32 v63, {2 if opt.get("tabp") else 10}, v0
    s_lshl_b32 s29, s28, {10 if opt.get("tabp") else 2}
    s_add_u32 s29, s29, {hex(TAB_OFF)}
    s_mul_i32 s30, s28, {REC_STRIDE}
    s_waitcnt lgkmcnt(0)
    s_barrier
    s_waitcnt vmcnt(0)
""")
    stamp(a, opt, 2)
    a("    s_mov_b64 exec, s[32:33]")
    for e in range(4):
        a(f"    v_lshlrev_b32_sdwa v{24 + e}, 2, v{8 + e} dst_sel:DWORD dst_unused:UNUSED_PAD src0_sel:DWORD src1_sel:BYTE_0")
        a(f"    ds_add_rtn_u32 v{32 + e}, v{24 + e}, v6")
    for e in range(4):
        a(f"    v_lshrrev_b32 v7, 8, v{8 + e}")
        a(f"    v_lshl_or_b32 v{12 + e}, v7, 24, v{12 + e}")
        a(f"    v_and_b32 v7, 7, v7")
        a(f"    v_lshl_or_b32 v{12 + e}, v7, 20, v{12 + e}")
    a("""
    s_mov_b64 exec, -1
    s_waitcnt lgkmcnt(0)
    s_barrier
""")
    stamp(a, opt, 3)
    a("""
    ds_read_b128 v[52:55], v48
    ds_read_b32 v56, v1
    s_waitcnt lgkmcnt(1)
    v_add_u32 v49, v52, v53
    v_add_u32 v50, v49, v54
    v_add_u32 v57, v50, v55
    v_add_u32 v51, v50, v55
""")
    scan64(a, 57)
    a(f"""
    v_sub_u32 v58, v57, v51
    v_add_u32 v59, v58, v52
    v_add_u32 v60, v58, v49
    v_add_u32 v61, v58, v50
    ds_write_b128 v48, v[58:61] offset:1024
""")
    for e in range(4):
        a(f"    ds_read_b32 v{40 + e}, v{24 + e} offset:1024")
    a(f"""
    ds_read_b32 v62, v1 offset:1024
    s_mov_b64 exec, s[32:33]
    s_waitcnt lgkmcnt(1)
""")
    for e in range(4):
        a(f"    v_add_lshl_u32 v{40 + e}, v{40 + e}, v{32 + e}, 2")
        a(f"    ds_write_b32 v{40 + e}, v{12 + e} offset:2048")
    a(f"""
    s_mov_b64 exec, -1
    v_cmp_gt_u32 vcc, 256, v0
    s_waitcnt lgkmcnt(4)
    v_lshl_or_b32 v62, v56, 16, v62
    s_mov_b64 exec, vcc
    s_cbranch_execz K1_NOTAB
    buffer_store_dword v62, v63, s[24:27], s29 offen
K1_NOTAB:
    s_mov_b64 exec, -1
    s_waitcnt lgkmcnt(0)
    s_barrier
    ds_read_b128 v[8:11], v3 offset:2048
    s_mov_b64 exec, s[32:33]
    s_cbranch_execz K1_D
    s_waitcnt lgkmcnt(0)
    buffer_store_dwordx4 v[8:11], v3, s[24:27], s30 offen{FL[opt.get("rst", 0)]}
K1_D:
    s_mov_b64 exec, -1
""")
    stamp(a, opt, 4)
    if opt.get("diag"):
        a("    s_waitcnt vmcnt(0)")
    stamp(a, opt, 5)
    stamp(a, opt, 6, real=True)
    dump_stamps(a, opt, 7, 12, 13, 7, DIAG_OFF)
    a(f"""
    s_endpgm

K1_WPREP:
    v_cmp_gt_u32 vcc, 256, v0
    s_mov_b64 exec, vcc
    s_cbranch_execz K1_END
    s_sub_u32 s14, s2, 256
    s_lshr_b32 s15, s14, 3
    s_and_b32 s28, s14, 7
    v_and_b32 v1, 15, v0
    v_bfe_u32 v2, v0, 4, 2
    v_lshrrev_b32 v3, 6, v0
    v_lshlrev_b32 v3, 13, v3
    v_lshl_add_u32 v3, v2, 11, v3
    v_lshl_add_u32 v3, v1, 1, v3
    s_lshl_b32 s29, s28, 5
    v_add_u32 v3, s29, v3
    v_lshlrev_b32 v4, 4, v0
    s_lshl_b32 s30, s14, 12
    s_add_u32 s30, s30, {hex(WF_OFF)}
    s_cmp_eq_u32 s15, 0
    s_waitcnt lgkmcnt(0)
    s_cselect_b32 s16, s8, s10
    s_cselect_b32 s17, s9, s11
    s_and_b32 s17, s17, 0xffff
    s_mov_b32 s18, 0x8000
    s_mov_b32 s19, 0x20000
""")
    srd(a, 24, 12, 13, WS_SIZE)
    for j in range(8):
        a(f"    buffer_load_ushort v{8 + j}, v3, s[16:19], 0 offen offset:{j * 256}")
    a("    s_waitcnt vmcnt(0)")
    for j in range(4):
        a(f"    v_lshl_or_b32 v{16 + j}, v{9 + 2 * j}, 16, v{8 + 2 * j}")
    a(f"""
    buffer_store_dwordx4 v[16:19], v4, s[24:27], s30 offen
K1_END:
    s_endpgm
""")


V_IDX = [(2, 4), (116, 118)]
V_COFF = 3
V_SIDX, V_P, V_RA, V_FK, V_NEND = 6, 7, 8, 9, 10
V_QVA, V_QVB = 11, 12
V_SEG = 13
V_PA, V_PB, V_T, V_AP, V_APX = 14, 15, 16, 17, 18
V_REM = 19
V_A = 20
V_D0, V_D1 = 24, 28
V_Q = 32
V_X = 48
V_WV = 96
V_REC = 112
V_GA = 120
V_RA0, V_OOFF, V_GADDR, V_TADDR = 124, 125, 126, 127
V_PM = 88
NS = 4
S_KEY, S_W, S_ROUND = 3, 10, 11
S_XI, S_XR, S_OUT, S_WS = 12, 16, 20, 24
S_S, S_PEND, S_NEND, S_REM = 28, 29, 30, 31
S_M, S_NODE, S_SEL, S_SPLIT, S_T = 32, 34, 35, 36, 37
S_VALID = 38
S_HASB = 43
S_V, S_MORE, S_THR = 47, 46, 48
S_EX = 52
S_E = 42
PT = [1, 3, 5]


def seg_loads(a, tag):
    a(f"""
    buffer_load_dwordx4 {vr(V_REC, 4)}, v{V_SEG}, s[{S_WS}:{S_WS + 3}], 0 offen
""")


def seg_load_b(a, tag):
    a(f"""
    v_cmp_lt_i32 vcc, 16, v{V_REM}
    s_mov_b32 s{S_HASB}, 0
    s_cmp_eq_u64 vcc, 0
    s_cbranch_scc1 K2_NOB_{tag}
    s_mov_b32 s{S_HASB}, 1
    buffer_load_dwordx4 {vr(V_REC + 4, 4)}, v{V_SEG}, s[{S_WS}:{S_WS + 3}], 0 offen offset:64
K2_NOB_{tag}:
""")


def a_setup(a, src):
    a(f"    v_mov_b32_dpp v{V_A + 0}, v{src} quad_perm:[0,1,2,3] row_mask:0xf bank_mask:0x5")
    a(f"    v_mov_b32_dpp v{V_A + 1}, v{src} row_shr:4 row_mask:0xf bank_mask:0xa")
    a(f"    v_mov_b32_dpp v{V_A + 2}, v{src} row_shl:4 row_mask:0xf bank_mask:0x5")
    a(f"    v_mov_b32_dpp v{V_A + 3}, v{src} quad_perm:[0,1,2,3] row_mask:0xf bank_mask:0xa")


def smf(a, X):
    a(f"    v_smfmac_f32_16x16x64_bf16 {vr(V_D0, 4)}, {vr(V_A, 4)}, {vr(X, 8)}, v{V_SIDX}")
    a(f"    v_smfmac_f32_16x16x64_bf16 {vr(V_D1, 4)}, {vr(V_A, 4)}, {vr(X + 8, 8)}, v{V_SIDX}")


def xload(a, X, idx, half):
    if OPT.get("noload"):
        return
    s = f"s[{S_XI}:{S_XI + 3}]"
    fl = ["", " sc0", " sc1", " sc0 sc1"][OPT.get("xfl", 0)]
    a(f"    buffer_load_dwordx4 {vr(X + 4 * half, 4)}, {vr(idx, 2)}, {s}, 0 idxen offen{fl}")
    a(f"    buffer_load_dwordx4 {vr(X + 8 + 4 * half, 4)}, {vr(idx, 2)}, {s}, 0 idxen offen offset:128{fl}")


def qreads(a):
    a(f"    v_xor_b32 v{V_QVA}, v{V_QVA}, v{V_COFF}")
    a(f"    v_xor_b32 v{V_QVB}, v{V_QVB}, v{V_COFF}")
    a(f"    ds_read_b128 {vr(V_Q + 0, 4)}, v{V_QVA} offset:{L_QT}")
    a(f"    ds_read_b128 {vr(V_Q + 4, 4)}, v{V_QVA} offset:{L_QT + 128}")
    a(f"    ds_read_b128 {vr(V_Q + 8, 4)}, v{V_QVB} offset:{L_QT}")
    a(f"    ds_read_b128 {vr(V_Q + 12, 4)}, v{V_QVB} offset:{L_QT + 128}")


def dots(a, X, lo, hi):
    for i in range(lo, hi):
        if OPT.get("nodots"):
            continue
        xa = X + (i if i < 4 else 8 + i - 4)
        xb = X + 4 + (i if i < 4 else 8 + i - 4)
        ca = "0" if i == 0 else f"v{V_PA}"
        cb = "0" if i == 0 else f"v{V_PB}"
        a(f"    v_dot2_f32_bf16 v{V_PA}, v{xa}, v{V_Q + i}, {ca}")
        a(f"    v_dot2_f32_bf16 v{V_PB}, v{xb}, v{V_Q + 8 + i}, {cb}")


def tail_patch(a, npairs_expr_sgpr):
    ia, ib = V_IDX[0]
    a(f"""
    v_lshrrev_b32 v{V_APX}, 3, v1
    s_sub_u32 s41, s40, 8
    s_cselect_b32 s41, 0, s41
    v_cmp_gt_u32 vcc, s40, v{V_APX}
    v_cmp_gt_u32 s[{S_EX}:{S_EX + 1}], s41, v{V_APX}
    s_nop 1
    v_cndmask_b32 v{ia}, v{V_PM}, v{ia}, vcc
    v_cndmask_b32_e64 v{ib}, v{V_PM}, v{ib}, s[{S_EX}:{S_EX + 1}]
""")


def step_early(a, s):
    X = V_X + 16 * s
    XN = V_X + 16 * (1 - s)
    ia, ib = V_IDX[0]
    pos = OPT["early"]
    a(f"""
K2_STEP{s}:
    s_waitcnt vmcnt(0) lgkmcnt(0)
""")

    def loads(tag):
        if OPT.get("tp"):
            a(f"""
    s_cmp_le_u32 s{S_REM}, 1
    s_cbranch_scc1 K2_LAST{s}
K2_LASTB{s}:
""")
        else:
            a(f"""
    s_cmp_eq_u32 s{S_REM}, 0
    s_cbranch_scc1 K2_SKIP{tag}{s}
""")
        xload(a, XN, ia, 0)
        xload(a, XN, ib, 1)
        a(f"""
    ds_read_u16 v{ia}, v{V_RA} offset:{(s + 2) * 64}
    ds_read_u16 v{ib}, v{V_RA} offset:{(s + 2) * 64 + 32}
K2_SKIP{tag}{s}:
""")

    if pos == 1:
        loads("A")
    dots(a, X, 0, 4)
    if pos == 2:
        loads("A")
    dots(a, X, 4, 8)
    if pos == 3:
        loads("A")
    a(f"""
    v_xor_b32 v{V_QVA}, v{V_QVA}, v{V_COFF}
    v_xor_b32 v{V_QVB}, v{V_QVB}, v{V_COFF}
    s_add_u32 s{S_PEND}, s{S_PEND}, 16
    v_permlane32_swap_b32 v{V_PA}, v{V_PB}
    ds_read_b128 {vr(V_Q + 0, 4)}, v{V_QVA} offset:{L_QT}
    ds_read_b128 {vr(V_Q + 4, 4)}, v{V_QVA} offset:{L_QT + 128}
    v_permlane16_swap_b32 v{V_PA}, v{V_PB}
    ds_read_b128 {vr(V_Q + 8, 4)}, v{V_QVB} offset:{L_QT}
    ds_read_b128 {vr(V_Q + 12, 4)}, v{V_QVB} offset:{L_QT + 128}
    v_add_f32_dpp v{V_T}, v{V_PA}, v{V_PA} row_shl:4 row_mask:0xf bank_mask:0x5
    v_add_f32_dpp v{V_T}, v{V_PB}, v{V_PB} row_shr:4 row_mask:0xf bank_mask:0xa
    ds_read_u16 v{V_QVA}, v{V_RA} offset:{(s + 2) * 64 + 2}
    ds_read_u16 v{V_QVB}, v{V_RA} offset:{(s + 2) * 64 + 34}
    v_add_f32_dpp v{V_T}, v{V_T}, v{V_T} quad_perm:[1,0,3,2] row_mask:0xf bank_mask:0xf
    s_nop 1
    v_add_f32_dpp v{V_T}, v{V_T}, v{V_T} quad_perm:[2,3,0,1] row_mask:0xf bank_mask:0xf
    v_exp_f32 v{V_T}, v{V_T}
    s_nop 0
    v_add_f32 v{V_T}, 1.0, v{V_T}
    v_rcp_f32 v{V_T}, v{V_T}
    s_cmp_le_u32 s{S_NEND}, s{S_PEND}
    v_cvt_pk_bf16_f32 v{V_AP}, v{V_T}, 0
    {"s_nop 0" if OPT.get("nobnd") else f"s_cbranch_scc1 K2_BND{s}"}
    s_nop 0
K2_RET{s}:
""")
    if not OPT.get("nopv"):
        a_setup(a, V_AP)
        a("    s_nop 1")
        smf(a, X)
    if pos == 4:
        loads("A")
    if s == 1:
        a(f"    v_add_u32 v{V_RA}, 128, v{V_RA}")
    a(f"""
    s_sub_u32 s{S_REM}, s{S_REM}, 1
    s_cbranch_scc1 K2_LOOP_END
""")
    if OPT.get("prio"):
        a(f"""
    s_cmp_eq_u32 s{S_REM}, s{S_THR}
    s_cbranch_scc1 K2_PRIO{s}
K2_PRIOB{s}:
""")


def step(a, s):
    if OPT.get("early"):
        return step_early(a, s)
    ns = OPT["ns"]
    X = V_X + 16 * s
    ia, ib = V_IDX[0]
    a(f"""
K2_STEP{s}:
    s_cmp_lt_u32 s{S_REM}, {ns - 1}
    s_cbranch_scc1 K2_TAIL{s}
    s_waitcnt vmcnt({4 * (ns - 1)}) lgkmcnt(2)
K2_BACK{s}:
""")
    dots(a, X, 0, 8)
    if OPT.get("fill"):
        a(f"""
    v_xor_b32 v{V_QVA}, v{V_QVA}, v{V_COFF}
    v_xor_b32 v{V_QVB}, v{V_QVB}, v{V_COFF}
    s_add_u32 s{S_PEND}, s{S_PEND}, 16
    v_permlane32_swap_b32 v{V_PA}, v{V_PB}
    ds_read_b128 {vr(V_Q + 0, 4)}, v{V_QVA} offset:{L_QT}
    ds_read_b128 {vr(V_Q + 4, 4)}, v{V_QVA} offset:{L_QT + 128}
    v_permlane16_swap_b32 v{V_PA}, v{V_PB}
    ds_read_b128 {vr(V_Q + 8, 4)}, v{V_QVB} offset:{L_QT}
    ds_read_b128 {vr(V_Q + 12, 4)}, v{V_QVB} offset:{L_QT + 128}
    v_add_f32_dpp v{V_T}, v{V_PA}, v{V_PA} row_shl:4 row_mask:0xf bank_mask:0x5
    v_add_f32_dpp v{V_T}, v{V_PB}, v{V_PB} row_shr:4 row_mask:0xf bank_mask:0xa
    ds_read_u16 v{V_QVA}, v{V_RA} offset:{(s + 2) * 64 + 2}
    ds_read_u16 v{V_QVB}, v{V_RA} offset:{(s + 2) * 64 + 34}
    v_add_f32_dpp v{V_T}, v{V_T}, v{V_T} quad_perm:[1,0,3,2] row_mask:0xf bank_mask:0xf
    s_nop 1
    v_add_f32_dpp v{V_T}, v{V_T}, v{V_T} quad_perm:[2,3,0,1] row_mask:0xf bank_mask:0xf
    v_exp_f32 v{V_T}, v{V_T}
    s_nop 0
    v_add_f32 v{V_T}, 1.0, v{V_T}""")
    else:
        qreads(a)
        a(f"""
    ds_read_u16 v{V_QVA}, v{V_RA} offset:{(s + 2) * 64 + 2}
    ds_read_u16 v{V_QVB}, v{V_RA} offset:{(s + 2) * 64 + 34}
    v_permlane32_swap_b32 v{V_PA}, v{V_PB}
    s_add_u32 s{S_PEND}, s{S_PEND}, 16
    s_nop 0
    v_permlane16_swap_b32 v{V_PA}, v{V_PB}
    s_nop 1
    v_add_f32_dpp v{V_T}, v{V_PA}, v{V_PA} row_shl:4 row_mask:0xf bank_mask:0x5
    v_add_f32_dpp v{V_T}, v{V_PB}, v{V_PB} row_shr:4 row_mask:0xf bank_mask:0xa
    s_nop 1
    v_add_f32_dpp v{V_T}, v{V_T}, v{V_T} quad_perm:[1,0,3,2] row_mask:0xf bank_mask:0xf
    s_nop 1
    v_add_f32_dpp v{V_T}, v{V_T}, v{V_T} quad_perm:[2,3,0,1] row_mask:0xf bank_mask:0xf
    v_exp_f32 v{V_T}, v{V_T}
    s_nop 0
    v_add_f32 v{V_T}, 1.0, v{V_T}""")
    a(f"""
    v_rcp_f32 v{V_T}, v{V_T}
    s_cmp_le_u32 s{S_NEND}, s{S_PEND}
    v_cvt_pk_bf16_f32 v{V_AP}, v{V_T}, 0
    {"s_nop 0" if OPT.get("nobnd") else f"s_cbranch_scc1 K2_BND{s}"}
    s_nop 0
K2_RET{s}:
""")
    if not OPT.get("nopv"):
        a_setup(a, V_AP)
        a("    s_nop 1")
        smf(a, X)
    a(f"""
    s_cmp_lt_u32 s{S_REM}, {ns}
    s_cbranch_scc1 K2_SKIP{s}
    s_waitcnt lgkmcnt(6)
""")
    xload(a, X, ia, 0)
    xload(a, X, ib, 1)
    a(f"""
    ds_read_u16 v{ia}, v{V_RA} offset:{(s + ns + 1) * 64}
    ds_read_u16 v{ib}, v{V_RA} offset:{(s + ns + 1) * 64 + 32}
K2_SKIP{s}:
""")
    if s == ns - 1:
        a(f"    v_add_u32 v{V_RA}, {ns * 64}, v{V_RA}")
    a(f"""
    s_sub_u32 s{S_REM}, s{S_REM}, 1
    s_cbranch_scc1 K2_LOOP_END
""")
    if OPT.get("prio"):
        a(f"""
    s_cmp_eq_u32 s{S_REM}, s{S_THR}
    s_cbranch_scc1 K2_PRIO{s}
K2_PRIOB{s}:
""")


def step_ool(a, s):
    X = V_X + 16 * s
    if not OPT.get("early"):
        a(f"K2_TAIL{s}:")
        for r in range(OPT["ns"] - 2, 0, -1):
            a(f"""
    s_cmp_eq_u32 s{S_REM}, {r}
    s_cbranch_scc0 K2_TAIL{s}_{r}
    s_waitcnt vmcnt({4 * r}) lgkmcnt(0)
    s_branch K2_BACK{s}
K2_TAIL{s}_{r}:
""")
        a(f"""
    s_waitcnt vmcnt(0) lgkmcnt(0)
    s_branch K2_BACK{s}
""")
    a(f"""
""")
    if OPT.get("inl"):
        T0 = V_REC
        a(f"""
K2_BND{s}:
    s_sub_u32 s{S_SPLIT}, s{S_NEND}, s{S_PEND}
    s_add_u32 s{S_SPLIT}, s{S_SPLIT}, 16
    v_cmp_gt_u32 vcc, s{S_SPLIT}, v{V_P}
    s_lshl_b32 s{S_T}, s{S_NODE}, 8
    s_add_u32 s{S_T}, s{S_T}, {L_AGG}
    v_cndmask_b32 v{V_APX}, 0, v{V_AP}, vcc
    v_cndmask_b32_e64 v{V_AP}, v{V_AP}, 0, vcc
    s_and_b32 s40, s{S_NODE}, 15
    s_lshl_b32 s40, s40, 4
""")
        a_setup(a, V_APX)
        a(f"""
    s_or_b32 s{S_T}, s{S_T}, s40
    v_xor_b32 v{V_APX}, s{S_T}, v{V_FK}
""")
        smf(a, X)
        a(f"""
    s_mov_b32 s{S_NEND}, -1
    s_cmp_eq_u64 s[{S_M}:{S_M + 1}], 0
    s_cbranch_scc1 K2_BLAST{s}
    s_ff1_i32_b64 s{S_NODE}, s[{S_M}:{S_M + 1}]
    s_bitset0_b64 s[{S_M}:{S_M + 1}], s{S_NODE}
    v_readlane_b32 s{S_NEND}, v{V_NEND}, s{S_NODE}
    s_nop 2
K2_BFL{s}:
""")
        for i in range(4):
            a(f"    v_permlane32_swap_b32 v{V_D0 + i}, v{V_D1 + i}")
        for i in range(4):
            a(f"    v_add_f32_dpp v{V_D0 + i}, v{V_D1 + i}, v{V_D0 + i} row_shl:8 row_mask:0xf bank_mask:0x3")
        a(f"""
    s_cmp_lg_u32 s{S_ROUND}, 0
    s_cbranch_scc1 K2_BRMW{s}
K2_BPK{s}:
    v_cvt_pk_bf16_f32 v{T0 + 0}, v{V_D0 + 0}, v{V_D0 + 1}
    v_cvt_pk_bf16_f32 v{T0 + 1}, v{V_D0 + 2}, v{V_D0 + 3}
    s_mov_b64 exec, s[{S_VALID}:{S_VALID + 1}]
    ds_write_b64 v{V_APX}, {vr(T0, 2)}
    s_mov_b64 exec, -1
""")
        for i in range(4):
            a(f"    v_mov_b64 {vr(V_D0 + 2 * i, 2)}, 0")
        a(f"""
    s_cmp_le_u32 s{S_NEND}, s{S_PEND}
    s_cbranch_scc0 K2_RET{s}
    s_branch K2_BND{s}
K2_BLAST{s}:
    s_nop 5
    s_branch K2_BFL{s}
K2_BRMW{s}:
    ds_read_b64 {vr(T0, 2)}, v{V_APX}
    s_waitcnt lgkmcnt(0)
    v_lshlrev_b32 v{T0 + 2}, 16, v{T0}
    v_and_b32 v{T0 + 3}, 0xffff0000, v{T0}
    v_add_f32 v{V_D0 + 0}, v{V_D0 + 0}, v{T0 + 2}
    v_add_f32 v{V_D0 + 1}, v{V_D0 + 1}, v{T0 + 3}
    v_lshlrev_b32 v{T0 + 2}, 16, v{T0 + 1}
    v_and_b32 v{T0 + 3}, 0xffff0000, v{T0 + 1}
    v_add_f32 v{V_D0 + 2}, v{V_D0 + 2}, v{T0 + 2}
    v_add_f32 v{V_D0 + 3}, v{V_D0 + 3}, v{T0 + 3}
    s_branch K2_BPK{s}
""")
    else:
        a(f"""
K2_BND{s}:
    s_sub_u32 s{S_SPLIT}, s{S_NEND}, s{S_PEND}
    s_add_u32 s{S_SPLIT}, s{S_SPLIT}, 16
    v_cmp_gt_u32 vcc, s{S_SPLIT}, v{V_P}
    s_mov_b32 s{S_SEL}, {s}
    s_nop 0
    v_cndmask_b32 v{V_APX}, 0, v{V_AP}, vcc
    v_cndmask_b32_e64 v{V_AP}, v{V_AP}, 0, vcc
    s_nop 1
""")
        a_setup(a, V_APX)
        a("    s_nop 1")
        smf(a, X)
        a("    s_branch K2_FLUSH")
    if OPT.get("tp") and OPT.get("early"):
        a(f"""
K2_LAST{s}:
    s_cmp_eq_u32 s{S_REM}, 0
    s_cbranch_scc1 K2_SKIPA{s}
    s_sub_u32 s40, s{S_E}, s{S_PEND}
    s_sub_u32 s40, s40, {16 if OPT["early"] < 3 or True else 0}
""")
        tail_patch(a, None)
        a(f"    s_branch K2_LASTB{s}")
    if OPT.get("prio"):
        a(f"""
K2_PRIO{s}:
    s_cmp_eq_u32 s{S_THR}, {PT[2] - 1}
    s_cbranch_scc0 K2_PRIO{s}_B
    s_setprio 2
    s_mov_b32 s{S_THR}, {PT[1] - 1}
    s_branch K2_PRIOB{s}
K2_PRIO{s}_B:
    s_cmp_eq_u32 s{S_THR}, {PT[1] - 1}
    s_cbranch_scc0 K2_PRIO{s}_C
    s_setprio 1
    s_mov_b32 s{S_THR}, {PT[0] - 1}
    s_branch K2_PRIOB{s}
K2_PRIO{s}_C:
    s_setprio 0
    s_mov_b32 s{S_THR}, -1
    s_branch K2_PRIOB{s}
""")


PARK_N = [0]


def park(a):
    n = PARK_N[0]
    PARK_N[0] += 1
    a(f"""
    s_cmp_lt_u32 s{S_W}, 8
    s_cbranch_scc1 K2_NOPARK{n}
    s_cmp_lg_u32 s{S_ROUND}, 0
    s_cbranch_scc1 K2_NOPARK{n}
    s_and_b32 s40, s{S_W}, 7
    s_lshl_b32 s40, s40, 12
    s_add_u32 s40, s40, {L_WV}
    v_lshlrev_b32 v{V_PA}, 4, v1
    v_add_u32 v{V_PA}, s40, v{V_PA}
""")
    for ks in range(4):
        a(f"    ds_write_b128 v{V_PA}, {vr(V_WV + 4 * ks, 4)} offset:{ks * 1024}")
    a(f"K2_NOPARK{n}:")


def gen_k2(a, opt):
    ws = f"s[{S_WS}:{S_WS + 3}]"
    a(f"""
.globl {MAIN}
.p2align 8
.type {MAIN},@function
{MAIN}:
    s_cmp_ge_u32 s2, 256
    s_cbranch_scc1 K2_END
    s_load_dwordx2 s[8:9], s[0:1], 56
    s_load_dwordx2 s[4:5], s[0:1], 0
    s_load_dwordx2 s[6:7], s[0:1], 40
""")
    stamp(a, opt, 0, real=True)
    stamp(a, opt, 1)
    a(f"""
    v_lshrrev_b32 v1, 6, v0
    s_and_b32 s{S_KEY}, s2, 7
    s_lshl_b32 s{S_KEY}, s{S_KEY}, 5
    v_readfirstlane_b32 s{S_W}, v1
    s_lshr_b32 s40, s2, 3
    s_add_u32 s{S_KEY}, s{S_KEY}, s40
    v_and_b32 v32, 0x3fc, v0
{"    v_lshlrev_b32 v32, 8, v32" if opt.get("tabp") else ""}
    s_lshl_b32 s42, s{S_KEY}, {2 if opt.get("tabp") else 10}
    s_add_u32 s42, s42, {hex(TAB_OFF)}
    s_lshl_b32 s41, s{S_KEY}, 8
    v_lshrrev_b32 v33, 4, v0
    v_and_b32 v34, 15, v0
    v_lshlrev_b32 v35, 16, v33
    v_lshl_or_b32 v35, v34, 4, v35
    v_add_u32 v{V_OOFF}, s41, v35
    s_waitcnt lgkmcnt(0)
""")
    srd(a, S_WS, 8, 9, WS_SIZE)
    a(f"    buffer_load_dword v37, v32, {ws}, s42 offen")
    srd(a, S_XR, 4, 5, N_NODES * 256)
    a(f"""
    buffer_load_dwordx4 v[40:43], v{V_OOFF}, s[{S_XR}:{S_XR + 3}], 0 offen
""")
    if opt.get("spf"):
        nl = opt["spf"]
        a(f"""
    s_cmp_lg_u32 s{S_W}, 15
    s_cbranch_scc1 K2_NOSPF
    s_and_b32 s40, s2, 7
    s_mul_i32 s40, s40, 782
    s_add_u32 s40, s40, {391 + 6400 - 64 * nl}
    s_and_b32 s40, s40, 0xffffff80
    s_max_u32 s40, s40, 6400
    s_sub_u32 s40, s40, 6400
    s_lshr_b32 s46, s2, 3
    s_mul_i32 s46, s46, {8 * REC_STRIDE}
    s_add_u32 s40, s40, s46
    v_and_b32 v38, 63, v0
    v_lshrrev_b32 v39, 3, v38
    v_mul_u32_u24 v39, {REC_STRIDE}, v39
    v_and_b32 v38, 7, v38
    v_lshl_add_u32 v39, v38, 7, v39
    buffer_load_dword v93, v39, {ws}, s40 offen
""")
        if nl == 16:
            a(f"    buffer_load_dword v92, v39, {ws}, s40 offen offset:1024")
        a("K2_NOSPF:")
    a(f"""
    v_and_b32 v1, 63, v0
    v_lshlrev_b32 v36, 4, v1
    s_lshl_b32 s45, s{S_W}, 12
    s_add_u32 s45, s45, {hex(WF_OFF)}
    s_cmp_ge_u32 s{S_W}, 8
    s_cbranch_scc1 K2_NOWQ
""")
    for ks in range(4):
        a(f"    buffer_load_dwordx4 {vr(V_X + 4 * ks, 4)}, v36, {ws}, s45 offen offset:{ks * 1024}")
    a(f"""
K2_NOWQ:
    v_lshrrev_b32 v38, 2, v0
    v_mul_u32_u24 v{V_SEG}, {REC_STRIDE}, v38
    v_and_b32 v44, 3, v0
    v_lshl_add_u32 v{V_SEG}, v44, 4, v{V_SEG}
    v_lshlrev_b32 v{V_REM}, 2, v44
    v_mov_b64 v[44:45], 0
    v_mov_b64 v[46:47], 0
    v_lshlrev_b32 v38, 4, v0
    ds_write_b128 v38, v[44:47] offset:{L_AGG}
    v_and_b32 v39, 127, v0
    v_lshlrev_b32 v39, 2, v39
    ds_write_b32 v39, v44
    v_and_b32 v38, 15, v33
    v_xor_b32 v38, v34, v38
    v_lshlrev_b32 v38, 4, v38
    v_lshl_or_b32 v{V_TADDR}, v33, 8, v38
    s_and_b32 s44, s{S_W}, 7
    v_and_b32 v32, 15, v1
    v_lshrrev_b32 v33, 4, v1
    s_lshl_b32 s49, s44, 1
    v_lshrrev_b32 v38, 1, v33
    v_add_u32 v38, s49, v38
    v_and_b32 v39, 1, v33
    v_lshlrev_b32 v39, 3, v39
    v_lshl_or_b32 v39, v32, 8, v39
    s_cmp_lt_u32 s{S_W}, 8
    s_cselect_b32 s49, 7, 15
    v_and_b32 v34, s49, v32
    v_xor_b32 v38, v38, v34
    v_lshl_or_b32 v{V_GADDR}, v38, 4, v39
    v_xor_b32 v38, v33, v32
    v_lshlrev_b32 v38, 4, v38
    v_lshl_or_b32 v{V_GA}, v32, 8, v38
    v_xor_b32 v{V_GA + 1}, 64, v{V_GA}
    v_xor_b32 v{V_GA + 2}, 0x80, v{V_GA}
    v_xor_b32 v{V_GA + 3}, 0xc0, v{V_GA}
    ; lane constants of the main loop
    v_and_b32 v{V_COFF}, 7, v1
    v_and_b32 v{V_SIDX}, 3, v1
    v_lshlrev_b32 v{V_COFF}, 4, v{V_COFF}
    v_mul_u32_u24 v{V_SIDX}, 0x1111, v{V_SIDX}
    v_mov_b32 v5, v{V_COFF}
    v_lshlrev_b32 v{V_P}, 2, v33
    v_bfe_u32 v39, v1, 2, 1
    v_lshl_add_u32 v{V_P}, v39, 1, v{V_P}
    v_bfe_u32 v39, v1, 3, 1
    v_add_u32 v{V_P}, v39, v{V_P}
    v_lshrrev_b32 v39, 5, v1
    v_lshl_or_b32 v{V_FK}, v39, 7, v{V_COFF}
    v_and_b32 v39, 1, v33
    v_lshl_or_b32 v{V_FK}, v39, 3, v{V_FK}
    v_lshrrev_b32 v{V_RA0}, 3, v1
    v_lshlrev_b32 v{V_RA0}, 2, v{V_RA0}
    v_add_u32 v{V_RA0}, {L_LIST}, v{V_RA0}
    v_mov_b64 {vr(V_A, 2)}, 0
    v_mov_b64 {vr(V_A + 2, 2)}, 0
""")
    srd(a, S_XI, 4, 5, N_NODES, stride=256)
    srd(a, S_OUT, 6, 7, N_NODES * 256)
    a(f"""
    s_mov_b32 s{S_ROUND}, 0
    s_mov_b32 s{S_VALID}, 0x00ff00ff
    s_mov_b32 s{S_VALID + 1}, 0x00ff00ff
    s_and_b32 s{S_V}, s{S_W}, 3
    s_lshl_b32 s{S_V}, s{S_V}, 2
    s_lshr_b32 s40, s{S_W}, 2
    s_add_u32 s{S_V}, s{S_V}, s40
    s_cmp_ge_u32 s{S_W}, 8
    s_cbranch_scc1 K2_TABB
    s_waitcnt vmcnt(5)
    s_branch K2_TABC
K2_TABB:
    s_waitcnt vmcnt({1 + (opt.get("spf", 0) // 8)})
{"    s_cmp_eq_u32 s10, 15" if opt.get("spf") else ""}
{"    s_cbranch_scc1 K2_TABC" if opt.get("spf") else ""}
{"    s_waitcnt vmcnt(1)" if opt.get("spf") else ""}
K2_TABC:
""")
    stamp(a, opt, 2)
    a(f"""
    v_and_b32 v38, 0xffff, v37
    v_lshrrev_b32 v37, 16, v37
    v_lshl_add_u32 v{V_SEG}, v38, 2, v{V_SEG}
    v_sub_u32 v{V_REM}, v37, v{V_REM}
""")
    seg_loads(a, "r0")
    a(f"""
    s_cmp_ge_u32 s{S_W}, 8
    s_cbranch_scc1 K2_XWB
    s_waitcnt vmcnt(5)
    s_branch K2_XWC
K2_XWB:
    s_waitcnt vmcnt({1 + (opt.get("spf", 0) // 8)})
{"    s_cmp_eq_u32 s10, 15" if opt.get("spf") else ""}
{"    s_cbranch_scc1 K2_XWC" if opt.get("spf") else ""}
{"    s_waitcnt vmcnt(1)" if opt.get("spf") else ""}
K2_XWC:
    ds_write_b128 v{V_TADDR}, v[40:43] offset:{L_XT}
""")
    seg_load_b(a, "r0")
    a(f"""
    s_waitcnt lgkmcnt(0)
    s_barrier
""")
    stamp(a, opt, 3)
    a(f"""
    s_cmp_ge_u32 s{S_W}, 8
    s_cbranch_scc1 K2_PF
""")
    B0 = V_X + 16
    QD = [V_D0, V_D1, 40, 44]
    BR = [B0, B0 + 16, B0 + 32, B0]

    def qreads_tile(tt):
        for ks in range(4):
            a(f"    ds_read_b128 {vr(BR[tt] + 4 * ks, 4)}, v{V_GA + ks} offset:{L_XT + tt * 4096}")

    def qmfma(tt):
        for ks in range(4):
            c = "0" if ks == 0 else vr(QD[tt], 4)
            a(f"    v_mfma_f32_16x16x32_bf16 {vr(QD[tt], 4)}, {vr(V_X + 4 * ks, 4)}, {vr(BR[tt] + 4 * ks, 4)}, {c}")

    for tt in range(3):
        qreads_tile(tt)
    a("    s_waitcnt vmcnt(1)")
    a(f"    s_mov_b32 s50, {hex(f32bits(QSCALE))}")
    a(f"    s_mov_b32 s51, s50")
    a("    s_waitcnt lgkmcnt(8)")
    qmfma(0)
    a("    s_waitcnt lgkmcnt(4)")
    qmfma(1)
    qreads_tile(3)
    a("    s_waitcnt lgkmcnt(4)")
    qmfma(2)
    a("    s_waitcnt lgkmcnt(0)")
    qmfma(3)
    for tt in range(4):
        if tt == 3:
            a("    s_nop 1")
        for i in range(2):
            a(f"    v_pk_mul_f32 {vr(QD[tt] + 2 * i, 2)}, {vr(QD[tt] + 2 * i, 2)}, s[50:51]")
        a(f"    v_cvt_pk_bf16_f32 v{80 + 2 * tt}, v{QD[tt]}, v{QD[tt] + 1}")
        a(f"    v_cvt_pk_bf16_f32 v{81 + 2 * tt}, v{QD[tt] + 2}, v{QD[tt] + 3}")
        a(f"    ds_write_b64 v{V_GADDR}, {vr(80 + 2 * tt, 2)} offset:{L_QT + tt * 4096}")
    npf = opt.get("pf2", 0)
    npi = (npf + 7) // 8
    a(f"""
    s_branch K2_PASS1
K2_PF:
""")
    for ks in range(4):
        a(f"    buffer_load_dwordx4 {vr(V_WV + 4 * ks, 4)}, v36, {ws}, s45 offen offset:{ks * 1024}")
    if npf:
        a(f"""
    s_lshr_b32 s40, s2, 3
    s_mul_i32 s40, s40, {782 * 128}
    s_sub_u32 s41, s{S_W}, 8
    s_lshl_b32 s46, s41, 13
    s_add_u32 s40, s40, s46
    s_add_u32 s40, s40, {opt.get("pf", 0) * 256 * 128}
    v_lshlrev_b32 v38, 7, v1
    v_add_u32 v38, s40, v38
""")
        for i in range(npi):
            a(f"""
    s_cmp_lt_u32 s41, {npf - 8 * i}
    s_cselect_b32 s46, 0, 0x40000000
    v_add_u32 v39, s46, v38
    buffer_load_dword v{95 - i}, v39, s[{S_XR}:{S_XR + 3}], 0 offen
""")
            if i + 1 < npi:
                a("    v_add_u32 v38, 0x10000, v38")
    AD, RK, BS = 64, 72, 80
    a(f"""
K2_PASS1:
    v_mov_b32 v{V_T}, 1
    v_lshlrev_b32 v{V_PA}, 2, v1
    v_mov_b32 v{V_APX}, {L_FLAG}
""")
    for pp in range(OPT["ns"] if (OPT["ns"] > 1 and not OPT.get("early")) else 0):
        a(f"    v_mov_b32 v{V_Q + 4 * pp + 1}, v{V_COFF}")
        a(f"    v_mov_b32 v{V_Q + 4 * pp + 3}, v{V_COFF}")
    a(f"""
    s_cmp_lt_u32 s{S_W}, 8
    s_cbranch_scc1 K2_SW_0
    s_cmp_lg_u32 s{S_ROUND}, 0
    s_cbranch_scc1 K2_SW_0
    s_waitcnt vmcnt({4 + npi})
    s_branch K2_SW_1
K2_SW_0:
    s_waitcnt vmcnt(0)
K2_SW_1:
""")
    stamp(a, opt, 4)
    for d in range(4):
        a(f"    v_cmp_lt_i32 s[{S_EX + 2 * d}:{S_EX + 2 * d + 1}], {d}, v{V_REM}")
    for d in range(4):
        a(f"    s_mov_b64 exec, s[{S_EX + 2 * d}:{S_EX + 2 * d + 1}]")
        a(f"    v_lshlrev_b32_sdwa v{AD + d}, 2, v{V_REC + d} dst_sel:DWORD dst_unused:UNUSED_PAD src0_sel:DWORD src1_sel:BYTE_3")
        a(f"    ds_add_rtn_u32 v{RK + d}, v{AD + d}, v{V_T}")
    a(f"""
    s_mov_b64 exec, -1
    s_cmp_eq_u32 s{S_HASB}, 0
    s_cbranch_scc1 K2_P1_NOB
""")
    for d in range(4):
        k = 4 + d
        a(f"    v_cmp_lt_i32 vcc, {16 + d}, v{V_REM}")
        a(f"    s_mov_b64 exec, vcc")
        a(f"    v_lshlrev_b32_sdwa v{AD + k}, 2, v{V_REC + k} dst_sel:DWORD dst_unused:UNUSED_PAD src0_sel:DWORD src1_sel:BYTE_3")
        a(f"    ds_add_rtn_u32 v{RK + k}, v{AD + k}, v{V_T}")
    a(f"""
    s_mov_b64 exec, -1
    v_cmp_lt_i32 vcc, 32, v{V_REM}
    s_cmp_eq_u64 vcc, 0
    s_cbranch_scc1 K2_P1_NOB
    s_mov_b64 exec, vcc
    ds_write_b32 v{V_APX}, v{V_T}
    s_mov_b64 exec, -1
K2_P1_NOB:
    s_waitcnt lgkmcnt(0)
    s_barrier
""")
    stamp(a, opt, 5)
    a(f"""
    ; per-node counts -> positions (lane = node): v_nend = inclusive sum, v_t = exclusive sum
    ds_read_b32 v{V_NEND}, v{V_PA}
    ds_read_b32 v{V_PB}, v{V_PA}
    ds_read_b32 v{V_APX}, v{V_APX}
    s_waitcnt lgkmcnt(0)
    v_readfirstlane_b32 s{S_MORE}, v{V_APX}
""")
    scan64(a, V_NEND)
    a(f"""
    s_nop 0
    v_readlane_b32 s{S_T}, v{V_NEND}, 63
    v_sub_u32 v{V_T}, v{V_NEND}, v{V_PB}
    v_add_u32 v{V_AP}, v{V_T}, v{V_NEND}
    v_cmp_lt_u32 s[{S_M}:{S_M + 1}], 0, v{V_PB}
""")
    for k in range(4):
        a(f"    ds_bpermute_b32 v{BS + k}, v{AD + k}, v{V_T}")
    a(f"""
    s_mul_i32 s40, s{S_V}, s{S_T}
    s_add_u32 s41, s40, s{S_T}
    s_add_u32 s40, s40, 7
    s_lshr_b32 s40, s40, 3
    s_add_u32 s41, s41, 7
    s_lshr_b32 s41, s41, 3
    v_cmp_le_u32 vcc, s40, v{V_AP}
    s_and_b64 s[{S_M}:{S_M + 1}], s[{S_M}:{S_M + 1}], vcc
    v_cmp_gt_u32 vcc, s41, v{V_AP}
    s_and_b64 s[{S_M}:{S_M + 1}], s[{S_M}:{S_M + 1}], vcc
    s_mov_b32 s{S_S}, 0
    s_mov_b32 s{S_REM}, 0
    s_cmp_eq_u64 s[{S_M}:{S_M + 1}], 0
    s_cbranch_scc1 K2_NOWORK_A
    s_ff1_i32_b64 s40, s[{S_M}:{S_M + 1}]
    s_flbit_i32_b64 s41, s[{S_M}:{S_M + 1}]
    s_sub_u32 s41, 63, s41
    v_readlane_b32 s{S_S}, v{V_T}, s40
    v_readlane_b32 s42, v{V_NEND}, s41
K2_NOWORK_A:
    s_waitcnt lgkmcnt(0)
""")
    for d in range(4):
        a(f"    s_mov_b64 exec, s[{S_EX + 2 * d}:{S_EX + 2 * d + 1}]")
        a(f"    v_add_lshl_u32 v{BS + d}, v{BS + d}, v{RK + d}, 2")
        a(f"    ds_write_b32 v{BS + d}, v{V_REC + d} offset:{L_LIST}")
    a(f"""
    s_mov_b64 exec, -1
    s_cmp_eq_u32 s{S_HASB}, 0
    s_cbranch_scc1 K2_P2_NOB
""")
    for k in range(4, 8):
        a(f"    ds_bpermute_b32 v{BS + k}, v{AD + k}, v{V_T}")
    a("    s_waitcnt lgkmcnt(0)")
    for d in range(4):
        k = 4 + d
        a(f"    v_cmp_lt_i32 vcc, {16 + d}, v{V_REM}")
        a(f"    s_mov_b64 exec, vcc")
        a(f"    v_add_lshl_u32 v{BS + k}, v{BS + k}, v{RK + k}, 2")
        a(f"    ds_write_b32 v{BS + k}, v{V_REC + k} offset:{L_LIST}")
    a(f"""
    s_mov_b64 exec, -1
K2_P2_NOB:
    s_cmp_eq_u64 s[{S_M}:{S_M + 1}], 0
    s_cbranch_scc1 K2_NOWORK_B
    s_sub_u32 s{S_REM}, s42, s{S_S}
    s_add_u32 s{S_REM}, s{S_REM}, 15
    s_lshr_b32 s{S_REM}, s{S_REM}, 4
    s_min_u32 s{S_REM}, s{S_REM}, 600
K2_NOWORK_B:
    s_lshl_b32 s40, s{S_S}, 2
    v_add_u32 v{V_RA}, s40, v{V_RA0}
    s_waitcnt lgkmcnt(0)
    s_barrier
""")
    stamp(a, opt, 6)
    if opt.get("diag"):
        a(f"    s_mov_b32 s{S_ST + 24}, s{S_REM}")
    a(f"""
    s_cmp_eq_u32 s{S_REM}, 0
    s_cbranch_scc1 K2_IDLE
""")
    ns = 1 if OPT.get("early") else OPT["ns"]
    PIDX = (lambda pp: (V_Q + 4 * pp, V_Q + 4 * pp + 2)) if ns > 1 else (lambda pp: V_IDX[0])
    for pp in range(ns):
        a(f"    ds_read_u16 v{PIDX(pp)[0]}, v{V_RA} offset:{pp * 64}")
        a(f"    ds_read_u16 v{PIDX(pp)[1]}, v{V_RA} offset:{pp * 64 + 32}")
    a(f"    ds_read_u16 v{V_QVA}, v{V_RA} offset:2")
    a(f"    ds_read_u16 v{V_QVB}, v{V_RA} offset:34")
    if OPT.get("tp"):
        a(f"""
    v_mov_b32 v{V_PM}, 0xffff
    s_cmp_eq_u32 s{S_REM}, 1
    s_cbranch_scc0 K2_PRO_FULL
    s_sub_u32 s40, s{S_E}, s{S_S}
    s_waitcnt lgkmcnt(2)
""")
        tail_patch(a, None)
        a("K2_PRO_FULL:")
    if OPT.get("prio"):
        a("    s_setprio 3")
    if ns == 4:
        park(a)
    for pp in range(ns):
        if pp > 0:
            a(f"    s_cmp_le_u32 s{S_REM}, {pp}")
            a(f"    s_cbranch_scc1 K2_PRO_DONE")
        a(f"    s_waitcnt lgkmcnt({min(15, 2 * (ns - pp))})" if ns < 4 else ("    s_waitcnt lgkmcnt(0)" if pp == 0 else ""))
        xload(a, V_X + 16 * pp, PIDX(pp)[0], 0)
        xload(a, V_X + 16 * pp, PIDX(pp)[1], 1)
        if OPT.get("prio") and pp < 2:
            a(f"    s_setprio {max(0, 1 - pp)}")
    a(f"""
K2_PRO_DONE:
    s_waitcnt lgkmcnt(0)
""")
    qreads(a)
    a(f"""
    ds_read_u16 v{V_QVA}, v{V_RA} offset:{64 + 2}
    ds_read_u16 v{V_QVB}, v{V_RA} offset:{64 + 34}
    ds_read_u16 v{V_IDX[0][0]}, v{V_RA} offset:{ns * 64}
    ds_read_u16 v{V_IDX[0][1]}, v{V_RA} offset:{ns * 64 + 32}
    s_sub_u32 s{S_REM}, s{S_REM}, 1
    s_mov_b32 s{S_PEND}, s{S_S}
    s_mov_b32 s{S_SEL}, {OPT["ns"]}
""")
    if OPT.get("prio"):
        a(f"""
    s_mov_b32 s{S_THR}, -1
    s_setprio 0
    s_cmp_lt_u32 s{S_REM}, {PT[0]}
    s_cbranch_scc1 K2_PRIO_SET
    s_mov_b32 s{S_THR}, {PT[0] - 1}
    s_setprio 1
    s_cmp_lt_u32 s{S_REM}, {PT[1]}
    s_cbranch_scc1 K2_PRIO_SET
    s_mov_b32 s{S_THR}, {PT[1] - 1}
    s_setprio 2
    s_cmp_lt_u32 s{S_REM}, {PT[2]}
    s_cbranch_scc1 K2_PRIO_SET
    s_mov_b32 s{S_THR}, {PT[2] - 1}
    s_setprio 3
K2_PRIO_SET:
""")
    if OPT.get("inl"):
        a(f"""
    s_ff1_i32_b64 s{S_NODE}, s[{S_M}:{S_M + 1}]
    s_bitset0_b64 s[{S_M}:{S_M + 1}], s{S_NODE}
    v_readlane_b32 s{S_NEND}, v{V_NEND}, s{S_NODE}
""")
        for i in range(4):
            a(f"    v_mov_b64 {vr(V_D0 + 2 * i, 2)}, 0")
        if OPT.get("dbl"):
            ia, ib = V_IDX[0]
            a(f"""
    s_cmp_eq_u32 s{S_REM}, 0
    s_cbranch_scc1 K2_LOOP
    s_waitcnt lgkmcnt(0)
""")
            xload(a, V_X + 16, ia, 0)
            xload(a, V_X + 16, ib, 1)
            a(f"""
    ds_read_u16 v{ia}, v{V_RA} offset:128
    ds_read_u16 v{ib}, v{V_RA} offset:160
    s_waitcnt vmcnt(4) lgkmcnt(0)
""")
            dots(a, V_X, 0, 8)
            a("    s_branch K2_SKIPA0")
        a("K2_LOOP:")
    else:
        a(f"""
    s_branch K2_NEXTNODE
K2_LOOP:
""")
    NS = OPT["ns"]
    for s in range(NS):
        step(a, s)
    a("    s_branch K2_STEP0")
    for s in range(NS):
        step_ool(a, s)
    a("K2_IDLE:")
    if NS == 4:
        park(a)
    a("    s_branch K2_LOOP_END")

    if not OPT.get("inl"):
        T0 = V_REC
        a(f"""
K2_FLUSH:
    s_lshl_b32 s{S_T}, s{S_NODE}, 8
    s_add_u32 s{S_T}, s{S_T}, {L_AGG}
    s_and_b32 s40, s{S_NODE}, 15
    s_lshl_b32 s40, s40, 4
    s_or_b32 s{S_T}, s{S_T}, s40
    v_xor_b32 v{V_APX}, s{S_T}, v{V_FK}
    s_nop 3
""")
        for i in range(4):
            a(f"    v_permlane32_swap_b32 v{V_D0 + i}, v{V_D1 + i}")
        for i in range(4):
            a(f"    v_add_f32_dpp v{V_D0 + i}, v{V_D1 + i}, v{V_D0 + i} row_shl:8 row_mask:0xf bank_mask:0x3")
        a(f"""
    s_cmp_lg_u32 s{S_ROUND}, 0
    s_cbranch_scc1 K2_FLUSH_RMW
K2_FLUSH_PACK:
    v_cvt_pk_bf16_f32 v{T0 + 0}, v{V_D0 + 0}, v{V_D0 + 1}
    v_cvt_pk_bf16_f32 v{T0 + 1}, v{V_D0 + 2}, v{V_D0 + 3}
    s_mov_b64 exec, s[{S_VALID}:{S_VALID + 1}]
    ds_write_b64 v{V_APX}, {vr(T0, 2)}
    s_mov_b64 exec, -1
K2_NEXTNODE:
    s_mov_b32 s{S_NEND}, -1
    s_cmp_eq_u64 s[{S_M}:{S_M + 1}], 0
    s_cbranch_scc1 K2_FLUSH_RET
    s_ff1_i32_b64 s{S_NODE}, s[{S_M}:{S_M + 1}]
    s_bitset0_b64 s[{S_M}:{S_M + 1}], s{S_NODE}
    v_readlane_b32 s{S_NEND}, v{V_NEND}, s{S_NODE}
""")
        for i in range(4):
            a(f"    v_mov_b64 {vr(V_D0 + 2 * i, 2)}, 0")
        a(f"""
    s_cmp_le_u32 s{S_NEND}, s{S_PEND}
    s_cbranch_scc1 K2_FLUSH_AGAIN
K2_FLUSH_RET:
""")
        for s in range(NS):
            a(f"    s_cmp_eq_u32 s{S_SEL}, {s}")
            a(f"    s_cbranch_scc1 K2_RET{s}")
        a("    s_branch K2_LOOP")
        a("K2_FLUSH_AGAIN:")
        for s in range(NS - 1):
            a(f"    s_cmp_eq_u32 s{S_SEL}, {s}")
            a(f"    s_cbranch_scc1 K2_BND{s}")
        a(f"    s_branch K2_BND{NS - 1}")
        a(f"""
K2_FLUSH_RMW:
    ds_read_b64 {vr(T0, 2)}, v{V_APX}
    s_waitcnt lgkmcnt(0)
    v_lshlrev_b32 v{T0 + 2}, 16, v{T0}
    v_and_b32 v{T0 + 3}, 0xffff0000, v{T0}
    v_add_f32 v{V_D0 + 0}, v{V_D0 + 0}, v{T0 + 2}
    v_add_f32 v{V_D0 + 1}, v{V_D0 + 1}, v{T0 + 3}
    v_lshlrev_b32 v{T0 + 2}, 16, v{T0 + 1}
    v_and_b32 v{T0 + 3}, 0xffff0000, v{T0 + 1}
    v_add_f32 v{V_D0 + 2}, v{V_D0 + 2}, v{T0 + 2}
    v_add_f32 v{V_D0 + 3}, v{V_D0 + 3}, v{T0 + 3}
    s_branch K2_FLUSH_PACK
""")
    a(f"""
K2_LOOP_END:
""")
    if OPT.get("prio"):
        a("    s_setprio 0")
    a(f"""
    s_cmp_lg_u32 s{S_MORE}, 0
    s_cbranch_scc1 K2_MORE
""")
    if NS == 4:
        a(f"""
    s_cmp_lt_u32 s{S_W}, 8
    s_cbranch_scc1 K2_NOFETCH
    s_and_b32 s40, s{S_W}, 7
    s_lshl_b32 s40, s40, 12
    s_add_u32 s40, s40, {L_WV}
    v_lshlrev_b32 v{V_PA}, 4, v1
    v_add_u32 v{V_PA}, s40, v{V_PA}
""")
        for ks in range(4):
            a(f"    ds_read_b128 {vr(V_WV + 4 * ks, 4)}, v{V_PA} offset:{ks * 1024}")
    a(f"""
K2_NOFETCH:
    s_waitcnt vmcnt(0) lgkmcnt(0)
""")
    stamp(a, opt, 7)
    a(f"""
    s_barrier
""")
    stamp(a, opt, 8)
    a(f"""
    s_cmp_lt_u32 s{S_W}, 8
    s_cbranch_scc1 K2_EPI_WAIT
""")
    EB = V_Q
    ED = [V_D0, V_D1, V_REC, V_REC + 4]
    for tt in range(4):
        for ks in range(4):
            a(f"    ds_read_b128 {vr(EB + (tt * 4 + ks) * 4, 4)}, v{V_GA + ks} offset:{L_AGG + tt * 4096}")
    for tt in range(4):
        a(f"    s_waitcnt lgkmcnt({4 * (3 - tt)})")
        for ks in range(4):
            c = "0" if ks == 0 else vr(ED[tt], 4)
            a(f"    v_mfma_f32_16x16x32_bf16 {vr(ED[tt], 4)}, {vr(V_WV + 4 * ks, 4)}, {vr(EB + (tt * 4 + ks) * 4, 4)}, {c}")
    a("    s_nop 3")
    for tt in range(4):
        if tt == 3:
            a("    s_nop 3")
        a(f"    v_cvt_pk_bf16_f32 v{16 + 2 * tt}, v{ED[tt]}, v{ED[tt] + 1}")
        a(f"    v_cvt_pk_bf16_f32 v{17 + 2 * tt}, v{ED[tt] + 2}, v{ED[tt] + 3}")
        a(f"    ds_write_b64 v{V_GADDR}, {vr(16 + 2 * tt, 2)} offset:{L_XT + tt * 4096}")
    a(f"""
K2_EPI_WAIT:
    s_waitcnt lgkmcnt(0)
    s_barrier
    ds_read_b128 v[40:43], v{V_TADDR} offset:{L_XT}
    s_waitcnt lgkmcnt(0)
    buffer_store_dwordx4 v[40:43], v{V_OOFF}, s[{S_OUT}:{S_OUT + 3}], 0 offen{FL[opt.get("ost", 2)]}
""")
    stamp(a, opt, 9)
    if opt.get("diag"):
        a("    s_waitcnt vmcnt(0)")
    stamp(a, opt, 10)
    stamp(a, opt, 11, real=True)
    dump_stamps(a, opt, 13, 8, 9, NW, DIAG_OFF + 0x100000)
    a(f"""
    s_endpgm

K2_MORE:
    s_waitcnt vmcnt(0) lgkmcnt(0)
    s_barrier
    s_add_u32 s{S_ROUND}, s{S_ROUND}, 1
    v_and_b32 v39, 127, v0
    v_lshlrev_b32 v39, 2, v39
    v_mov_b32 v38, 0
    ds_write_b32 v39, v38
    v_add_u32 v{V_SEG}, 128, v{V_SEG}
    v_subrev_u32 v{V_REM}, 32, v{V_REM}
""")
    seg_loads(a, "rn")
    seg_load_b(a, "rn")
    a(f"""
    s_waitcnt lgkmcnt(0)
    s_barrier
    s_branch K2_PASS1
K2_END:
    s_endpgm
""")


HEADER = f"""; Kernarg layout for this problem (64 bytes, ptrs only, base s[0:1]):
;
;
; @launch kernel={K1} grid=(272,1,1) block=(256,1,1) lds=8320
; @launch kernel={MAIN} grid=(256,1,1) block=({NW * 64},1,1) lds=@LDS@
.amdgcn_target "amdgcn-amd-amdhsa--gfx950"
.text
"""


def kd(name, vgpr, sgpr):
    acc = (vgpr + 3) // 4 * 4
    return f"""
.p2align 6
.amdhsa_kernel {name}
  .amdhsa_next_free_vgpr {vgpr}
  .amdhsa_next_free_sgpr {sgpr}
  .amdhsa_accum_offset {acc}
  .amdhsa_group_segment_fixed_size 0
  .amdhsa_kernarg_size 64
  .amdhsa_user_sgpr_count 2
  .amdhsa_user_sgpr_kernarg_segment_ptr 1
  .amdhsa_system_sgpr_workgroup_id_x 1
  .amdhsa_float_denorm_mode_32 3
.end_amdhsa_kernel
"""


def generate(opt=None):
    opt = opt or {}
    OPT.clear()
    OPT.update(opt)
    OPT.setdefault("early", 3)
    OPT.setdefault("tp", 0)
    OPT.setdefault("ns", 2 if OPT.get("early") else 1)
    OPT.setdefault("prio", 1)
    OPT.setdefault("pf2", 5)
    OPT.setdefault("k1w", 1)
    OPT.setdefault("inl", 1)
    OPT.setdefault("wfirst", 1)
    opt = dict(OPT)
    PARK_N[0] = 0
    if "pt" in opt:
        v = opt["pt"]
        PT[:] = [v // 100, (v // 10) % 10, v % 10]
    a = Asm()
    hdr = HEADER.replace("@LDS@", str(L_END if OPT["ns"] == 4 else L_WV))
    if opt.get("k1w"):
        hdr = hdr.replace("grid=(272,1,1) block=(256,1,1) lds=8320", "grid=(272,1,1) block=(448,1,1) lds=9216")
    a(hdr)
    (gen_k1_wide if opt.get("k1w") else gen_k1)(a, opt)
    gen_k2(a, opt)
    a('.section .rodata,"a"')
    sg = 96 if opt.get("diag") else 64
    a(kd(K1, 80, sg))
    a(kd(MAIN, 128, sg))
    return "\n".join(ln for ln in a.text().split("\n") if ln.strip()) + "\n"


if __name__ == "__main__":
    out = sys.argv[1] if len(sys.argv) > 1 else "gather_scatter__kernel_systems_refs_featgraph__graph.s"
    opt = {}
    for kv in sys.argv[2:]:
        k, _, v = kv.partition("=")
        opt[k] = int(v) if v else 1
    open(out, "w").write(generate(opt))
    print("wrote", out)
```
